```python
import torch

def _softmax(x, axis=-1):
    return torch.softmax(x, dim=axis)
def _gelu(x):
    return torch.nn.functional.gelu(x, approximate="tanh")
def _silu(x):
    return torch.nn.functional.silu(x)
def _sigmoid(x):
    return torch.sigmoid(x)
def _layernorm(x, axis=-1, eps=1e-5):
    m = x.mean(dim=axis, keepdim=True)
    v = x.var(dim=axis, keepdim=True, unbiased=False)
    return (x - m) / torch.sqrt(v + eps)
def _scatter_add(tgt, idx, src, axis=0):
    return tgt.clone().index_add_(axis, idx, src)
def _segment_sum(src, seg, n):
    out = torch.zeros((n,) + src.shape[1:], dtype=src.dtype)
    return out.index_add_(0, seg, src)
def _pad(x, pw):
    flat = tuple(v for pair in reversed(pw) for v in pair)
    return torch.nn.functional.pad(x, flat)

kernel_name = 'interleave_layers__linear_kernel_hedgehog__geglu_ffn__prompt'

def setup_inputs():

    _w = (lambda a: (lambda t: t.to(torch.bfloat16) if t.is_floating_point() else t)(torch.as_tensor(a)))
    def _A_setup():
        B, S, D, H = 1, 2048, 512, 32
        Dh = D // H
        return {
            "x": _w((lambda *s: torch.randn(*s, dtype=torch.bfloat16) * 0.05)(B, S, D)),
            "wqkv": _w((lambda *s: torch.randn(*s, dtype=torch.bfloat16) * 0.2)(D, 3 * D)),
            "w_phi": _w((lambda *s: torch.randn(*s, dtype=torch.bfloat16) * 0.2)(H, Dh, Dh) * (Dh ** -0.5)),
            "wo": _w((lambda *s: torch.randn(*s, dtype=torch.bfloat16) * 0.05)(D, D)),
        }
    _A_in = _A_setup()

    def _B_setup():
        B, S, D, F = 1, 2048, 512, 1376
        return {
            "x": _w((lambda *s: torch.randn(*s, dtype=torch.bfloat16) * 0.05)(B, S, D)),
            "w_gate": _w((lambda *s: torch.randn(*s, dtype=torch.bfloat16) * 0.05)(D, F)),
            "w_up": _w((lambda *s: torch.randn(*s, dtype=torch.bfloat16) * 0.05)(D, F)),
            "w_down": _w((lambda *s: torch.randn(*s, dtype=torch.bfloat16) * 0.05)(F, D)),
        }
    _B_in = _B_setup()

    return {
        "A_x": _A_in["x"],
        "A_wqkv": _A_in["wqkv"],
        "A_w_phi": _A_in["w_phi"],
        "A_wo": _A_in["wo"],
        "B_x": _B_in["x"],
        "B_w_gate": _B_in["w_gate"],
        "B_w_up": _B_in["w_up"],
        "B_w_down": _B_in["w_down"],
    }

def reference(A_x, A_wqkv, A_w_phi, A_wo, B_x, B_w_gate, B_w_up, B_w_down):
    def _A_ref(x, wqkv, w_phi, wo):
        B, S, D = x.shape
        H = 32; Dh = D // H
        qkv = (lambda x, *d: x.permute(*d))((x @ wqkv).reshape(B, S, 3, H, Dh), 2, 0, 3, 1, 4)
        q, k, v = qkv[0], qkv[1], qkv[2]
        pq = torch.einsum("bhsd,hdf->bhsf", q, w_phi)
        pk = torch.einsum("bhsd,hdf->bhsf", k, w_phi)
        phi_q = torch.concatenate([_softmax(pq, axis=-1), _softmax(-pq, axis=-1)], axis=-1)
        phi_k = torch.concatenate([_softmax(pk, axis=-1), _softmax(-pk, axis=-1)], axis=-1)
        kv = torch.einsum("bhsf,bhsd->bhfd", phi_k, v)
        z  = torch.einsum("bhsf->bhf", phi_k)
        num = torch.einsum("bhqf,bhfd->bhqd", phi_q, kv)
        den = torch.einsum("bhqf,bhf->bhq", phi_q, z)[..., None] + 1e-6
        o = num / den
        return (lambda x, *d: x.permute(*d))(o, 0, 2, 1, 3).reshape(B, S, D) @ wo

    def _B_ref(x, w_gate, w_up, w_down):
        return (_gelu(x @ w_gate) * (x @ w_up)) @ w_down

    x = A_x
    x = x + _A_ref(_layernorm(x, axis=-1), A_wqkv, A_w_phi, A_wo)
    x = x + _B_ref(_layernorm(x, axis=-1), B_w_gate, B_w_up, B_w_down)
    x = x + _A_ref(_layernorm(x, axis=-1), A_wqkv, A_w_phi, A_wo)
    x = x + _B_ref(_layernorm(x, axis=-1), B_w_gate, B_w_up, B_w_down)
    return x
```

```python
import re

def regs_of(tok):
    tok = tok.strip()
    tok = re.sub(r'^-', '', tok)
    m = re.match(r'^(abs|neg)\((.*)\)$', tok)
    if m: tok = m.group(2)
    tok = tok.strip('|')
    m = re.match(r'^([vsa])\[(\d+):(\d+)\]$', tok)
    if m:
        return [f"{m.group(1)}{i}" for i in range(int(m.group(2)), int(m.group(3)) + 1)]
    if re.match(r'^[vsa]\d+$', tok): return [tok]
    if tok == 'vcc': return ['vcc_lo', 'vcc_hi']
    if tok == 'exec': return ['exec_lo', 'exec_hi']
    if tok in ('vcc_lo', 'vcc_hi', 'exec_lo', 'exec_hi', 'm0', 'scc'): return [tok]
    return []

TRANS = ('v_exp_f32', 'v_log_f32', 'v_rcp_f32', 'v_rsq_f32', 'v_sqrt_f32', 'v_sin_f32', 'v_cos_f32')

class Ins:
    __slots__ = ('text', 'op', 'dst', 'src', 'kind', 'srcC', 'tag')
    def __init__(self, text, tag=None):
        self.text = text
        self.tag = tag
        body = text.split(';')[0].strip()
        parts = body.split(None, 1)
        self.op = op = parts[0]
        rest = parts[1] if len(parts) > 1 else ''
        ops = [o.strip() for o in rest.split(',')] if rest else []
        joined = []
        depth = 0
        cur = ''
        for ch in rest:
            if ch == '[' or ch == '(': depth += 1
            if ch == ']' or ch == ')': depth -= 1
            if ch == ',' and depth == 0:
                joined.append(cur.strip()); cur = ''
            else:
                cur += ch
        if cur.strip(): joined.append(cur.strip())
        ops = joined
        mods = ''
        if ops:
            last = ops[-1].split()
            ops[-1] = last[0]
            mods = ' '.join(last[1:])
        R = [regs_of(o) for o in ops]
        flat = lambda l: [r for x in l for r in x]
        self.srcC = []
        dst, src = [], []
        if op.startswith('v_mfma'):
            kind = 'mfma'; dst = R[0]; src = flat(R[1:]); self.srcC = R[3]
        elif op.startswith('v_cmp'):
            kind = 'valu'; dst = R[0]; src = flat(R[1:])
            if op.startswith('v_cmpx'): dst = dst + ['exec_lo', 'exec_hi']
        elif op.startswith('v_permlane') and 'swap' in op:
            kind = 'perm'; dst = flat(R); src = flat(R)
        elif op.startswith('v_readfirstlane') or op.startswith('v_readlane'):
            kind = 'rdlane'; dst = R[0]; src = flat(R[1:])
        elif op.startswith('v_dot2c') or op.startswith('v_dot2'):
            kind = 'dot'; dst = R[0]; src = flat(R[1:]) + (R[0] if 'dot2c' in op else [])
            self.srcC = R[0] if 'dot2c' in op else R[3]
        elif op.startswith('v_fmac') or op.startswith('v_pk_fmac'):
            kind = 'valu'; dst = R[0]; src = flat(R)
        elif op.startswith('v_cndmask'):
            kind = 'valu'; dst = R[0]; src = flat(R[1:])
            if len(ops) == 3: src += ['vcc_lo', 'vcc_hi']
        elif op.startswith('v_add_co') or op.startswith('v_sub_co') or op.startswith('v_addc_co'):
            kind = 'valu'; dst = R[0] + R[1]; src = flat(R[2:])
        elif op == 'v_nop':
            kind = 'valu'
        elif op.startswith('v_'):
            kind = 'trans' if op.replace('_e32', '').replace('_e64', '') in TRANS else 'valu'
            dst = R[0]; src = flat(R[1:])
            if 'dpp' in op or 'row_' in mods or 'quad_perm' in mods: kind = 'dpp'; src += dst
        elif op.startswith('ds_read') or op.startswith('ds_bpermute') or op.startswith('ds_swizzle'):
            kind = 'ds'; dst = R[0]; src = flat(R[1:])
        elif op.startswith('ds_write') or op.startswith('ds_add'):
            kind = 'ds'; src = flat(R)
        elif op.startswith('buffer_load') or op.startswith('global_load'):
            kind = 'vmem'
            if ' lds' in (' ' + mods) or 'load_lds' in op:
                src = flat(R) + ['m0']; kind = 'vmem'
                self.tag = self.tag
            else:
                dst = R[0]; src = flat(R[1:])
        elif op.startswith('buffer_store') or op.startswith('global_store'):
            kind = 'vmem'; src = flat(R)
        elif op.startswith('buffer_atomic') or op.startswith('global_atomic'):
            kind = 'vmem'; src = flat(R)
            if 'sc0' in mods.split(): dst = R[0]
        elif op.startswith('s_load') or op.startswith('s_memtime') or op.startswith('s_memrealtime'):
            kind = 'smem'; dst = R[0]; src = flat(R[1:])
        elif op.startswith('s_cmp') or op.startswith('s_bitcmp'):
            kind = 'salu'; dst = ['scc']; src = flat(R)
        elif op in ('s_waitcnt', 's_nop', 's_barrier', 's_endpgm', 's_sleep', 's_setprio', 's_branch') or op.startswith('s_cbranch'):
            kind = 'ctl'
        elif op.startswith('s_'):
            kind = 'salu'; dst = R[0] + ['scc']; src = flat(R[1:])
            if 'saveexec' in op: dst += ['exec_lo', 'exec_hi']; src += ['exec_lo', 'exec_hi']
            if op.startswith('s_cselect') or op.startswith('s_addc'): src += ['scc']
            if op.startswith('s_mov') or op.startswith('s_cselect') or op.startswith('s_getreg') or op.startswith('s_getpc') or op.startswith('s_mul_i32') or op.startswith('s_mul_hi'):
                dst = R[0]
            if op.startswith('s_addk') or op.startswith('s_mulk'): src += R[0]
        else:
            raise ValueError('unknown op ' + text)
        self.kind = kind; self.dst = dst; self.src = src

class Prog:
    def __init__(self):
        self.lines = []
        self.pos = 0
        self.lastw = {}
        self.mfma_c = {}
        self.store_data = {}
        self.vm = []
        self.lg = []
        self.nid = 0
        self.stats = {'nops': 0, 'ins': 0}
    def raw(self, text):
        self.lines.append(text)
    def comment(self, text):
        self.lines.append('  ; ' + text)
    def _emit(self, text, n=1):
        self.lines.append('  ' + text); self.pos += n; self.stats['ins'] += 1
    def nop(self, n):
        while n > 0:
            k = min(n, 16)
            self._emit(f's_nop {k-1}', k); self.stats['nops'] += k
            n -= k
    def wait(self, vm=None, lg=None):
        parts = []
        if vm is not None and len(self.vm) > vm:
            assert vm <= 63
            parts.append(f'vmcnt({vm})'); self.vm = self.vm[len(self.vm) - vm:] if vm else []
        if lg is not None and len(self.lg) > lg:
            assert lg <= 15
            parts.append(f'lgkmcnt({lg})'); self.lg = self.lg[len(self.lg) - lg:] if lg else []
        if parts: self._emit('s_waitcnt ' + ' '.join(parts))
    def wait_hard(self, vm=None, lg=None):
        parts = []
        if vm is not None:
            parts.append(f'vmcnt({vm})'); self.vm = self.vm[len(self.vm) - vm:] if (vm and len(self.vm) > vm) else ([] if vm == 0 else self.vm)
        if lg is not None:
            parts.append(f'lgkmcnt({lg})'); self.lg = self.lg[len(self.lg) - lg:] if (lg and len(self.lg) > lg) else ([] if lg == 0 else self.lg)
        self._emit('s_waitcnt ' + ' '.join(parts))
    def wait_vm_id(self, id_):
        idx = [i for i, (k, _) in enumerate(self.vm) if k == id_]
        if idx:
            n = len(self.vm) - 1 - idx[0]
            self.wait(vm=min(n, 63))
    def _need(self, ins):
        need = 0
        def dist(p): return self.pos - p
        touched_r = set(ins.src); touched_w = set(ins.dst)
        for r in touched_r | touched_w:
            lw = self.lastw.get(r)
            if lw:
                k, p, op = lw
                d = self.pos - p - 1
                req = 0
                isr = r in touched_r
                if k == 'mfma':
                    passes = 8 if '32x32' in op else 4
                    full = 12 if passes == 8 else 8
                    if ins.kind == 'mfma':
                        if r in ins.srcC and isr and self.lastw_full.get(r) == tuple(ins.srcC) and r not in (set(ins.src) - set(ins.srcC)) | set():
                            a_b = [x for x in ins.src if x not in ins.srcC]
                            req = 0 if r not in a_b else full
                        elif r in ins.srcC: req = full - 2
                        elif isr: req = full
                        else: req = full
                    elif ins.kind in ('valu', 'trans', 'dpp', 'perm', 'rdlane', 'dot', 'vmem', 'ds'):
                        req = full
                elif k in ('valu', 'trans', 'dpp', 'perm', 'rdlane', 'dot'):
                    isv = r[0] == 'v' and r[1:].isdigit()
                    if isv and isr:
                        if ins.kind == 'mfma': req = max(req, 2)
                        if ins.kind == 'dpp': req = max(req, 2)
                        if ins.kind == 'perm': req = max(req, 2)
                        if ins.kind == 'rdlane': req = max(req, 1)
                        if k == 'trans' and ins.kind in ('valu', 'dpp', 'perm', 'rdlane', 'dot', 'mfma', 'vmem', 'ds'): req = max(req, 1)
                    if k == 'dot' and isv:
                        if ins.kind == 'dot' and ins.op == op and r in ins.srcC and r not in [x for x in ins.src if x not in ins.srcC]:
                            pass
                        else: req = max(req, 3)
                    if not isv and isr:
                        if ins.kind == 'vmem': req = max(req, 5)
                        if ins.kind in ('valu', 'trans', 'dpp', 'dot', 'perm', 'mfma'): req = max(req, 2)
                        if ins.kind == 'rdlane': req = max(req, 4)
                        if ins.kind == 'salu': req = max(req, 1)
                elif k == 'salu':
                    if r == 'm0' and isr and ins.kind in ('vmem', 'ds'): req = max(req, 1)
                need = max(need, req - d)
            if r in touched_w:
                p = self.mfma_c.get(r)
                if p is not None and ins.kind in ('valu', 'trans', 'dpp', 'perm', 'dot'):
                    need = max(need, 7 - (self.pos - p - 1))
                p = self.store_data.get(r)
                if p is not None:
                    need = max(need, 2 - (self.pos - p - 1))
        return need
    lastw_full = {}
    def I(self, text, tag=None):
        ins = Ins(text)
        touched = set(ins.src) | set(ins.dst)
        vmn = None; lgn = None
        for i, (k, d) in enumerate(self.vm):
            if d and touched & set(d):
                n = len(self.vm) - 1 - i
                vmn = n if vmn is None else min(vmn, n)
        for i, (k, d) in enumerate(self.lg):
            if d and touched & set(d):
                n = len(self.lg) - 1 - i
                lgn = n if lgn is None else min(lgn, n)
        if vmn is not None: vmn = min(vmn, 63)
        if lgn is not None: lgn = min(lgn, 15)
        if vmn is not None or lgn is not None: self.wait(vm=vmn, lg=lgn)
        n = self._need(ins)
        if n > 0: self.nop(n)
        p = self.pos
        nws = 1
        if ins.op == 's_nop': nws = int(text.split()[1]) + 1
        self._emit(text, nws)
        for r in ins.dst:
            if ins.kind in ('vmem', 'ds', 'smem'):
                self.lastw.pop(r, None)
            else:
                self.lastw[r] = (ins.kind, p, ins.op)
                if ins.kind == 'mfma': self.lastw_full[r] = tuple(ins.dst)
        if ins.kind == 'mfma':
            for r in ins.srcC: self.mfma_c[r] = p
        self.nid += 1
        if ins.kind == 'vmem':
            self.vm.append((self.nid, ins.dst))
            assert len(self.vm) <= 63, 'too many vmem outstanding'
            if ('store' in ins.op or 'atomic' in ins.op) and ('x4' in ins.op or 'x3' in ins.op):
                for r in ins.src:
                    if r[0] == 'v': self.store_data[r] = p
        if ins.kind == 'ds':
            self.lg.append((self.nid, ins.dst))
            if len(self.lg) > 15:
                pass
        return self.nid
    def fence(self):
        need = 0
        for r, (k, p, op) in self.lastw.items():
            d = self.pos - p - 1
            if k == 'mfma': req = 12 if '32x32' in op else 8
            elif k in ('valu', 'trans', 'dpp', 'perm', 'rdlane', 'dot'):
                isv = r[0] == 'v' and r[1:].isdigit()
                req = (3 if k == 'dot' else 2) if isv else 5
            elif r == 'm0': req = 1
            else: req = 0
            need = max(need, req - d)
        for r, p in self.mfma_c.items(): need = max(need, 7 - (self.pos - p - 1))
        for r, p in self.store_data.items(): need = max(need, 2 - (self.pos - p - 1))
        if need > 0: self.nop(need)
    def label(self, name):
        self.fence()
        self.lines.append(name + ':')
    def branch(self, text):
        self.fence()
        self._emit(text)
    def snapshot(self):
        return (list(self.vm), list(self.lg))
    def restore(self, snap):
        self.vm, self.lg = list(snap[0]), list(snap[1])
    def text(self):
        return '\n'.join(self.lines) + '\n'
```

```python
S, D, H, F = 2048, 512, 32, 1376
KB = 1024
W1F = 0x000000
W2F = 0x180000
W3F = 0x200000
W4F = 0x4B0000
EXT1 = 0x610000
EXT3 = 0x614000
APHI = 0x620000
TSB = 0x700000
LB0 = 0x1000000
LBS = 0x1000000
XIN = 0x000000
STIN = 0x200000
KVP = 0x280000
KVS = 640
OF = 0x400000
X1F = 0x600000
ST1 = 0x800000
HF = 0x900000
FLG = 0xF00000
FL = 128
F_XC = FLG
F_AR = FLG + 64 * FL
F_OC = FLG + 96 * FL
F_X1 = FLG + 224 * FL
F_HC = FLG + 288 * FL
NFLAG = 352
WS_BYTES = 0x10000000
G = 4096
RESV = 38 * G
L_EXT1 = RESV
L_EXT3 = RESV + 1024
L_APHI = RESV + 3072
LDS_BYTES = 163840
L_SCRT = 24 * G
L_KVA = 32 * G
L_EX2 = 33 * G
L_EX4 = 24 * G
def w4_slot(g):
    if g < 6: return 32 + g
    if g < 14: return 24 + (g - 6)
    if g < 30: return g - 14
    if g < 38: return 16 + (g - 30)
    return 32 + (g - 38)
def std(i): return 16 * (i >> 4) + 8 * ((i >> 2) & 1) + 4 * ((i >> 3) & 1) + (i & 3)
def hs(i): return 16 * ((i >> 2) & 1) + 4 * (i >> 3) + (i & 3)
def kmap_x(ks, half, e): return 32 * (ks >> 1) + 16 * half + 8 * (ks & 1) + e
def kmap_n(ks, half, e): return 16 * ks + 8 * half + e
def units_of(j):
    return [3 * j, 3 * j + 1, 3 * j + 2] if j < 11 else [33 + 2 * (j - 11), 34 + 2 * (j - 11)]
```

```python
from asm import Prog
from layout import *
GRID = 264
LDS = 1024
def vr(a, n): return f'v[{a}:{a+n-1}]' if n > 1 else f'v{a}'
WS = 's[4:7]'; SRC = 's[8:11]'
def gen():
    p = Prog(); I = p.I
    p.raw('.globl prep_kernel\n.p2align 8\n.type prep_kernel,@function\nprep_kernel:')
    I(f's_cmp_ge_u32 s2, {GRID}'); p.branch('s_cbranch_scc1 P_end')
    I('s_load_dwordx2 s[4:5], s[0:1], 80')
    I('v_readfirstlane_b32 s14, v0')
    I('v_and_b32 v1, 63, v0')
    I(f's_mov_b32 s6, {WS_BYTES:#x}'); I('s_mov_b32 s7, 0x20000'); I('s_mov_b32 s11, 0x20000')
    I('s_lshr_b32 s14, s14, 6')
    I('v_lshlrev_b32 v2, 4, v1')
    I('v_and_b32 v3, 31, v1')
    I('v_lshrrev_b32 v4, 5, v1')
    I('v_bfe_u32 v7, v3, 2, 1'); I('v_bfe_u32 v8, v3, 3, 1'); I('v_and_b32 v9, 3, v3'); I('v_and_b32 v5, 16, v3')
    I('v_lshl_add_u32 v5, v7, 3, v5'); I('v_lshl_add_u32 v5, v8, 2, v5'); I('v_add_u32 v5, v5, v9')
    I('v_lshrrev_b32 v6, 3, v3'); I('v_lshlrev_b32 v6, 2, v6'); I('v_lshl_add_u32 v6, v7, 4, v6'); I('v_add_u32 v6, v6, v9')
    I('s_mov_b32 s20, 0x3f803f80')
    for lim, lab in ((48, 'P_w1'), (134, 'P_w3'), (150, 'P_w2'), (198, 'P_w4'), (262, 'P_x'), (263, 'P_phi')):
        I(f's_cmp_lt_u32 s2, {lim}'); p.branch(f's_cbranch_scc1 {lab}')
    p.wait_hard(lg=0)
    I('v_lshlrev_b32 v10, 7, v0')
    I('v_cmp_gt_u32 vcc, 64, v0'); I('v_cndmask_b32 v11, 0, 16, vcc'); I('v_mov_b32 v12, 0')
    I(f's_mov_b32 s21, {LB0+FLG:#x}'); I(f's_mov_b32 s22, {LB0+LBS+FLG:#x}')
    I(f'buffer_store_dword v11, v10, {WS}, s21 offen'); I(f'buffer_store_dword v12, v10, {WS}, s22 offen')
    I(f'v_add_u32 v10, {256*FL}, v10')
    I(f'buffer_store_dword v12, v10, {WS}, s21 offen'); I(f'buffer_store_dword v12, v10, {WS}, s22 offen')
    p.wait(vm=0); I('s_endpgm')

    def tile(kind, karg, nbytes, stride, rowmap, xmap, M, A, nks_total, wsum):
        I(f's_mov_b32 s10, {nbytes}')
        p.wait_hard(lg=0)
        hst = 16 if xmap else 8
        I(f'v_mul_u32_u24 v10, {hst*stride}, v4')
        I(f'v_add_u32 v11, s30, v{5 if rowmap=="std" else 6}')
        I(f'v_lshl_add_u32 v10, v11, 1, v10')
        I('s_lshl_b32 s34, s14, 3'); I('s_add_u32 s34, s34, s32')
        if wsum: I('v_mov_b32 v12, 0')
        for half in range(2):
            for f in range(4):
                ff = half * 4 + f
                delta = 16 * ff if not xmap else 32 * (ff >> 1) + 8 * (ff & 1)
                I(f's_mul_i32 s35, s34, {16*stride}')
                for e in range(8):
                    I(f's_add_u32 s{36+(e&1)}, s35, {(delta+e)*stride}')
                    I(f'buffer_load_ushort v{32+8*f+e}, v10, {SRC}, s{36+(e&1)} offen')
            for f in range(4):
                ff = half * 4 + f
                d = 64 + 4 * ff
                for q in range(4): I(f'v_lshl_or_b32 v{d+q}, v{32+8*f+2*q+1}, 16, v{32+8*f+2*q}')
                if wsum:
                    for q in range(4): I(f'v_dot2c_f32_bf16 v12, s20, v{d+q}')
                I(f's_add_u32 s38, s34, {ff}')
                if M:
                    I(f's_cmp_ge_u32 s38, {M}'); I(f's_cselect_b32 s39, {(2048 - M*A) & 0xffffffff:#x}, 0')
                I(f's_mul_i32 s40, s38, {A}'); I('s_add_u32 s40, s40, s31')
                if M: I('s_add_u32 s40, s40, s39')
                if nks_total % 32:
                    I(f's_cmp_ge_u32 s38, {nks_total}'); I(f's_cselect_b32 s40, {WS_BYTES:#x}, s40')
                I(f'buffer_store_dwordx4 {vr(d,4)}, v2, {WS}, s40 offen')
        if wsum:
            I('v_mov_b32 v13, v12'); I('v_permlane32_swap_b32 v13, v12'); I('v_add_f32 v12, v12, v13')
            I('s_lshl_b32 s35, s14, 8'); I('v_lshl_add_u32 v13, v1, 2, s35')
            I('ds_write_b32 v13, v12')
            p.wait(lg=0); I('s_barrier')
            I('v_lshlrev_b32 v13, 2, v1')
            for q in range(4): I(f'ds_read_b32 v{14+q}, v13 offset:{q*256}')
            I('v_add_f32 v14, v14, v15'); I('v_add_f32 v16, v16, v17'); I('v_add_f32 v14, v14, v16')
            I('v_cvt_pk_bf16_f32 v15, v14, v14'); I('v_and_b32 v16, 0xffff0000, v15'); I('v_sub_f32 v16, v14, v16')
            I('v_cvt_pk_bf16_f32 v16, v14, v16'); I('v_mov_b32 v17, v16')
            I('v_lshlrev_b32 v13, 3, v1')
            I('v_cmp_gt_u32 vcc, 32, v0'); I('s_and_saveexec_b64 s[42:43], vcc')
            I(f'buffer_store_dwordx2 v[16:17], v13, {WS}, s33 offen')
        p.wait(vm=0); I('s_endpgm')

    p.label('P_w1')
    I('s_load_dwordx2 s[8:9], s[0:1], 8')
    I('s_mul_i32 s21, s2, 43'); I('s_lshr_b32 s21, s21, 7')
    I('s_mul_i32 s22, s21, 3'); I('s_sub_u32 s22, s2, s22')
    I('s_lshl_b32 s30, s21, 5')
    I('s_mul_i32 s31, s21, 98304'); I('s_lshl_b32 s33, s21, 10'); I(f's_add_u32 s33, s33, {EXT1:#x}')
    I('s_lshl_b32 s23, s22, 8'); I('s_add_u32 s33, s33, s23')
    I('s_mov_b32 s32, 0')
    I('s_cmp_eq_u32 s22, 2'); p.branch('s_cbranch_scc1 P_w1q')
    I('s_lshl_b32 s23, s22, 9'); I('s_add_u32 s30, s30, s23'); I('s_add_u32 s30, s30, 512')
    I('s_lshl_b32 s23, s22, 10'); I('s_add_u32 s31, s31, s23')
    tile('w1', 8, 512 * 1536 * 2, 3072, 'std', True, 0, 2048, 32, True)
    p.label('P_w1q')
    I('s_add_u32 s31, s31, 65536')
    tile('w1q', 8, 512 * 1536 * 2, 3072, 'std', True, 0, 1024, 32, True)
    p.label('P_w3')
    I('s_sub_u32 s21, s2, 48'); I('s_and_b32 s22, s21, 1'); I('s_lshr_b32 s21, s21, 1')
    I('s_lshl_b32 s23, s22, 3'); I('s_add_u32 s0, s0, s23'); I('s_addc_u32 s1, s1, 0')
    I('s_load_dwordx2 s[8:9], s[0:1], 40')
    I('s_lshl_b32 s30, s21, 5'); I('s_lshl_b32 s31, s21, 16'); I('s_lshl_b32 s23, s22, 10'); I('s_add_u32 s31, s31, s23')
    I(f's_add_u32 s31, s31, {W3F:#x}')
    I('s_lshl_b32 s33, s21, 9'); I('s_lshl_b32 s23, s22, 8'); I('s_add_u32 s33, s33, s23'); I(f's_add_u32 s33, s33, {EXT3:#x}')
    I('s_mov_b32 s32, 0')
    tile('w3', 40, 512 * 1376 * 2, 2752, 'std', True, 0, 2048, 32, True)
    p.label('P_w2')
    I('s_load_dwordx2 s[8:9], s[0:1], 24')
    I('s_sub_u32 s21, s2, 134'); I('s_lshl_b32 s30, s21, 5')
    I('s_lshr_b32 s22, s21, 1'); I('s_lshl_b32 s31, s22, 16'); I('s_and_b32 s22, s21, 1'); I('s_lshl_b32 s22, s22, 10')
    I('s_add_u32 s31, s31, s22'); I(f's_add_u32 s31, s31, {W2F:#x}'); I('s_mov_b32 s32, 0')
    tile('w2', 24, 512 * 512 * 2, 1024, 'hs', False, 16, 4096, 32, False)
    p.label('P_w4')
    I('s_load_dwordx2 s[8:9], s[0:1], 56')
    I('s_sub_u32 s24, s2, 150'); I('s_mul_i32 s21, s24, 43'); I('s_lshr_b32 s21, s21, 7')
    I('s_mul_i32 s22, s21, 3'); I('s_sub_u32 s32, s24, s22'); I('s_lshl_b32 s32, s32, 5')
    I('s_lshl_b32 s30, s21, 5')
    I('s_lshr_b32 s22, s21, 1'); I(f's_mul_i32 s31, s22, {43*4096}'); I('s_and_b32 s22, s21, 1'); I('s_lshl_b32 s22, s22, 10')
    I('s_add_u32 s31, s31, s22'); I(f's_add_u32 s31, s31, {W4F:#x}')
    tile('w4', 56, 1376 * 512 * 2, 1024, 'hs', False, 43, 4096, 86, False)
    p.label('P_x')
    I('s_load_dwordx2 s[8:9], s[0:1], 0')
    I(f's_mov_b32 s10, {S*D*2}')
    I('s_sub_u32 s21, s2, 198')
    I('v_lshlrev_b32 v10, 10, v3'); I('v_lshl_add_u32 v10, v4, 5, v10')
    I('s_lshl_b32 s22, s21, 15'); I('s_lshl_b32 s23, s14, 8'); I('s_add_u32 s23, s23, s22')
    I('s_lshl_b32 s24, s14, 13'); I('s_add_u32 s24, s24, s22'); I(f's_add_u32 s24, s24, {LB0+XIN:#x}')
    I('s_add_u32 s25, s24, 4096')
    I('s_lshl_b32 s26, s21, 12'); I('s_lshl_b32 s27, s14, 10'); I('s_add_u32 s26, s26, s27'); I(f's_add_u32 s26, s26, {LB0+STIN:#x}')
    p.wait_hard(lg=0)
    for f in range(8):
        I(f'buffer_load_dwordx4 {vr(32+4*f,4)}, v10, {SRC}, s23 offen offset:{(f>>1)*64+(f&1)*16}')
    I('v_lshlrev_b32 v11, 3, v1'); I('v_mov_b32 v12, 0x80000000'); I('v_cmp_gt_u32 vcc, 32, v1'); I('v_cndmask_b32 v11, v12, v11, vcc')
    for c in range(4):
        for t in range(2):
            f = 2 * c + t
            I(f'buffer_store_dwordx4 {vr(32+4*f,4)}, v2, {WS}, s{24+f//4} offen offset:{(f%4)*1024}')
        a = 64 + 4 * c
        I(f'v_mov_b32 v{a}, 0'); I(f'v_mov_b32 v{a+1}, 0')
        for q in range(8):
            I(f'v_dot2c_f32_bf16 v{a}, s20, v{32+8*c+q}'); I(f'v_dot2c_f32_bf16 v{a+1}, v{32+8*c+q}, v{32+8*c+q}')
        I(f'v_mov_b32 v{a+2}, v{a}'); I(f'v_mov_b32 v{a+3}, v{a+1}')
        I(f'v_permlane32_swap_b32 v{a+2}, v{a}'); I(f'v_permlane32_swap_b32 v{a+3}, v{a+1}')
        I(f'v_pk_add_f32 {vr(a,2)}, {vr(a,2)}, {vr(a+2,2)}')
        I(f'buffer_store_dwordx2 {vr(a,2)}, v11, {WS}, s26 offen offset:{c*256}')
    p.wait(vm=0); I('s_endpgm')
    p.label('P_phi')
    I('s_load_dwordx2 s[8:9], s[0:1], 16')
    I(f's_mov_b32 s10, {32*16*16*2}')
    I('v_lshrrev_b32 v10, 3, v3'); I('v_lshl_add_u32 v10, v10, 2, v9'); I('v_lshlrev_b32 v10, 1, v10')
    I('v_lshl_add_u32 v10, v4, 8, v10')
    I('v_mul_u32_u24 v11, 0x8000, v7'); I('v_lshl_or_b32 v11, v11, 16, v11')
    I('s_lshl_b32 s21, s14, 12'); I('s_lshl_b32 s22, s14, 13'); I(f's_add_u32 s22, s22, {APHI:#x}'); I('s_add_u32 s23, s22, 4096')
    p.wait_hard(lg=0)
    for half in range(2):
        for f in range(4):
            for e in range(8):
                I(f'buffer_load_ushort v{32+8*f+e}, v10, {SRC}, s21 offen offset:{(half*4+f)*512+e*32}')
        for f in range(4):
            d = 64 + 16 * half + 4 * f
            for q in range(4):
                I(f'v_lshl_or_b32 v{d+q}, v{32+8*f+2*q+1}, 16, v{32+8*f+2*q}'); I(f'v_xor_b32 v{d+q}, v{d+q}, v11')
            I(f'buffer_store_dwordx4 {vr(d,4)}, v2, {WS}, s{22+half} offen offset:{f*1024}')
    p.wait(vm=0)
    p.label('P_end')
    I('s_endpgm')
    return p.text()
```

```python
import sys, math
from asm import Prog
from layout import *

NAME = 'interleave_layers__linear_kernel_hedgehog__geglu_ffn__prompt'
TS = '--ts' in sys.argv
def f32(x):
    import struct
    return '0x%08x' % struct.unpack('<I', struct.pack('<f', x))[0]
def vr(a, n): return f'v[{a}:{a+n-1}]' if n > 1 else f'v{a}'
def sr(a, n): return f's[{a}:{a+n-1}]' if n > 1 else f's{a}'

WS = 's[4:7]'; OUT = 's[8:11]'
sRB, sJ, sW, sLAYER = 12, 13, 14, 16
sRT, sRT2, sCT = 17, 18, 19
(sXIN, sSTIN, sFXC, sKVR, sFAR, sOFW, sFOCW, sFOCR, sOFR, sX1W, sST1W, sFX1W, sFX1R, sX1R, sST1R,
 sHFW, sFHCW, sFHCR, sHFR, sXNW, sSTNW, sFXNW) = range(20, 42)
LAYER_SREGS = list(range(20, 42))
sHALF = 42
sT0, sT1, sT2, sT3, sT4, sT5 = 44, 45, 46, 47, 48, 49
sHEAVY = 50
sONES, sSELLO, sSELHI, sMASKHI = 51, 52, 53, 54
sPOLL, sITER = 55, 56
sU0 = 57
sTSA = 58
sTS = 60
sW1, sW2, sW3, sW4 = 20, 21, 22, 23
sKVW, sFARW = 24, 25
sHOFF = 26
vL0, vL1, vL2, vL8, vSTW, vAR, vKVA, vPH, vEXT, vOWN, vOTH, vEXW, vEXR, vOUT, vP = range(1, 16)
XB, ACC, AF, RES, BEXT, CON, TMP = 16, 144, 208, 232, 240, 244, 248
NAF = 6

class K:
    def __init__(self):
        self.p = Prog(); self.uid = 0; self.nts = 0
    def I(self, t): return self.p.I(t)
    def lab(self, base):
        self.uid += 1; return f'L_{base}_{self.uid}'
    def ts(self, idx):
        if not TS: return
        self.p.wait(lg=0)
        self.I(f's_memtime s[{sTSA}:{sTSA+1}]'); self.p.wait_hard(lg=0)
        self.I(f's_mov_b32 s{sTS+idx}, s{sTSA}')
    def ts_flush(self, n):
        if not TS: return
        p = self.p
        self.I(f'v_mov_b32 v{vP}, 0')
        for i in range(n):
            self.I(f'v_writelane_b32 v{vP}, s{sTS+i}, {i}')
        self.I(f's_lshl_b32 s{sT0}, s2, 3'); self.I(f's_add_u32 s{sT0}, s{sT0}, s{sW}')
        self.I(f's_lshl_b32 s{sT0}, s{sT0}, 1'); self.I(f's_add_u32 s{sT0}, s{sT0}, s{sLAYER}')
        self.I(f's_lshl_b32 s{sT0}, s{sT0}, 8'); self.I(f's_add_u32 s{sT0}, s{sT0}, {TSB}')
        self.I(f'v_lshrrev_b32 v0, 2, v{vL0}')
        self.I(f'buffer_store_dword v{vP}, v0, {WS}, s{sT0} offen')
        p.wait(vm=0)
    def barrier(self):
        self.p.wait(lg=0)
        self.I('s_barrier')
    def lds(self, addr):
        return (vL0 + addr // 65536, addr % 65536)
    def rdfrag(self, dst, addr):
        b, o = self.lds(addr)
        self.I(f'ds_read_b128 {vr(dst,4)}, v{b} offset:{o}')
    def poll(self, sflag, n):
        p = self.p
        p.wait(vm=0)
        L = self.lab('poll'); Dn = self.lab('pdone')
        self.I(f's_mov_b32 s{sITER}, 0x8000')
        p.label(L)
        self.I(f'buffer_load_dword v{vP}, off, {WS}, s{sflag} sc1')
        p.wait(vm=0)
        self.I(f'v_readfirstlane_b32 s{sPOLL}, v{vP}')
        self.I(f's_cmp_ge_u32 s{sPOLL}, {n}')
        p.branch(f's_cbranch_scc1 {Dn}')
        self.I(f's_sub_u32 s{sITER}, s{sITER}, 1')
        self.I(f's_cmp_lg_u32 s{sITER}, 0')
        p.branch(f's_cbranch_scc1 {L}')
        p.label(Dn)
    def signal(self, sflag):
        p = self.p
        self.I(f'v_mov_b32 v{vP}, 1')
        p.wait(vm=0)
        self.I('s_mov_b64 exec, 1')
        self.I(f'buffer_atomic_add v{vP}, off, {WS}, s{sflag} sc1')
        self.I('s_mov_b64 exec, -1')
    def loadfrags(self, dst, sbase, idxs, first=0):
        cur = None
        for k, (reg, idx) in enumerate(idxs):
            q = idx // 4
            if q != cur:
                cur = q
                if q == 0: s = sbase
                else:
                    s = sT0 + (q & 1)
                    self.I(f's_add_u32 s{s}, s{sbase}, {q*4096}')
            self.I(f'buffer_load_dwordx4 {vr(reg,4)}, v{vL0}, {WS}, s{s} offen offset:{(idx%4)*1024} sc1')
    def loadstats(self, dst, sbase):
        for i in range(8):
            self.I(f'buffer_load_dwordx2 {vr(dst+2*i,2)}, v{vL8}, {WS}, s{sbase} offen offset:{i*512} sc1')
    def stats_ops(self, st, mode):
        o = []
        for i in range(1, 8):
            o.append(f'v_add_f32 v{st}, v{st}, v{st+2*i}')
            o.append(f'v_add_f32 v{st+1}, v{st+1}, v{st+2*i+1}')
        o.append(f'v_mov_b32 v{st+2}, v{st}')
        o.append(f'v_mov_b32 v{st+3}, v{st+1}')
        o.append(f'v_permlane32_swap_b32 v{st+2}, v{st}')
        o.append(f'v_permlane32_swap_b32 v{st+3}, v{st+1}')
        o.append(f'v_add_f32 v{st}, v{st}, v{st+2}')
        o.append(f'v_add_f32 v{st+1}, v{st+1}, v{st+3}')
        o.append(f'v_mul_f32 v{st}, {f32(-1/512)}, v{st}')
        o.append(f'v_mul_f32 v{st+1}, {f32(1/512)}, v{st+1}')
        o.append(f'v_fma_f32 v{st+1}, -v{st}, v{st}, v{st+1}')
        o.append(f'v_cvt_pk_bf16_f32 v{BEXT}, v{st}, v{st}')
        o.append(f'v_max_f32 v{st+1}, 0, v{st+1}')
        o.append(f'v_add_f32 v{st+1}, {f32(1e-5)}, v{st+1}')
        o.append(f'v_and_b32 v{st+2}, s{sMASKHI}, v{BEXT}')
        o.append(f'v_rsq_f32 v{st+3}, v{st+1}')
        o.append(f'v_sub_f32 v{st+2}, v{st}, v{st+2}')
        o.append(f'v_cvt_pk_bf16_f32 v{BEXT+1}, v{st+2}, v{st+2}')
        o.append(f'v_cndmask_b32 v{BEXT}, v{BEXT}, 0, s[{sHALF}:{sHALF+1}]')
        o.append(f'v_cndmask_b32 v{BEXT+1}, v{BEXT+1}, 0, s[{sHALF}:{sHALF+1}]')
        if mode == 1:
            o.append(f'v_mul_f32 v{CON}, {f32(math.log2(math.e))}, v{st+3}')
            o.append(f'v_mov_b32 v{CON+2}, v{st+3}')
        else:
            c0 = -2 * math.log2(math.e) * math.sqrt(2 / math.pi)
            o.append(f'v_mul_f32 v{CON}, {f32(c0)}, v{st+3}')
            o.append(f'v_mul_f32 v{st+2}, v{st+3}, v{st+3}')
            o.append(f'v_mul_f32 v{st+2}, {f32(0.044715)}, v{st+2}')
            o.append(f'v_mul_f32 v{CON+1}, v{CON}, v{st+2}')
            o.append(f'v_mov_b32 v{CON+2}, v{st+1}')
        return o
    def gemm(self, steps, fill=None, fill_per=4, pre=None, at=None, lead=NAF-1):
        fill = list(fill or [])
        n = len(steps)
        issued = 0
        def issue(i):
            steps[i][1](AF + 4 * (i % NAF))
        hold = {}
        for i in range(n):
            if at and i in at: at[i]()
            while issued < n and issued <= i + lead:
                if at and ('rd', issued) in at: at[('rd', issued)]()
                issue(issued); issued += 1
            acc, _, b, first = steps[i]
            c = '0' if first else vr(acc, 16)
            self.I(f'v_mfma_f32_32x32x16_bf16 {vr(acc,16)}, {vr(AF+4*(i%NAF),4)}, {vr(b,4)}, {c}')
            budget = fill_per
            while fill and budget > 0:
                t = fill.pop(0)
                if callable(t): t(); budget -= 1; continue
                self.I(t)
                budget -= 2 if t.split()[0] in ('v_exp_f32', 'v_rcp_f32', 'v_rsq_f32') else 1
        for t in fill:
            if callable(t): t()
            else: self.I(t)
    def softmax2(self, P0, P1):
        I = self.I
        Ps = (P0, P1); m = (TMP, TMP + 2); s = (TMP + 4, TMP + 6)
        for a in range(2): I(f'v_max3_f32 v{m[a]}, v{Ps[a]}, v{Ps[a]+1}, v{Ps[a]+2}')
        for i in range(3, 15, 2):
            for a in range(2): I(f'v_max3_f32 v{m[a]}, v{m[a]}, v{Ps[a]+i}, v{Ps[a]+i+1}')
        for a in range(2): I(f'v_max_f32 v{m[a]}, v{m[a]}, v{Ps[a]+15}')
        for a in range(2): I(f'v_mul_f32 v{m[a]}, -v{CON}, v{m[a]}'.replace('v_mul_f32', 'v_mul_f32_e64'))
        for i in range(0, 16, 2):
            for a in range(2):
                I(f'v_pk_fma_f32 {vr(Ps[a]+i,2)}, {vr(Ps[a]+i,2)}, {vr(CON,2)}, {vr(m[a],2)} op_sel_hi:[1,0,0]')
        for i in range(16):
            for a in range(2): I(f'v_exp_f32 v{Ps[a]+i}, v{Ps[a]+i}')
        for a in range(2): I(f'v_pk_add_f32 {vr(s[a],2)}, {vr(Ps[a],2)}, {vr(Ps[a]+2,2)}')
        for i in range(4, 16, 2):
            for a in range(2): I(f'v_pk_add_f32 {vr(s[a],2)}, {vr(s[a],2)}, {vr(Ps[a]+i,2)}')
        for a in range(2): I(f'v_add_f32 v{s[a]}, v{s[a]}, v{s[a]+1}')
        for a in range(2): I(f'v_rcp_f32 v{s[a]}, v{s[a]}')
        for i in range(0, 16, 2):
            for a in range(2):
                I(f'v_pk_mul_f32 {vr(Ps[a]+i,2)}, {vr(Ps[a]+i,2)}, {vr(s[a],2)} op_sel_hi:[1,0]')
        for i in range(8):
            for a in range(2): I(f'v_cvt_pk_bf16_f32 v{Ps[a]+i}, v{Ps[a]+2*i}, v{Ps[a]+2*i+1}')
    def feat(self, acc, P0, P1):
        I = self.I
        for i in range(8): I(f'v_cvt_pk_bf16_f32 v{acc+i}, v{acc+2*i}, v{acc+2*i+1}')
        I(f'v_mfma_f32_32x32x16_bf16 {vr(P0,16)}, {vr(AF,4)}, {vr(acc,4)}, 0')
        I(f'v_mfma_f32_32x32x16_bf16 {vr(P1,16)}, {vr(AF+4,4)}, {vr(acc+4,4)}, 0')
    def gelu_ops(self, Gr, Ur, packed):
        o = []
        if not packed:
            for i in range(0, 16, 2):
                t = [TMP + (i % 8), TMP + (i % 8) + 1]
                for a in range(2): o.append(f'v_mul_f32 v{t[a]}, v{Gr+i+a}, v{Gr+i+a}')
                for a in range(2): o.append(f'v_fma_f32 v{t[a]}, v{t[a]}, v{CON+1}, v{CON}')
                for a in range(2): o.append(f'v_mul_f32 v{t[a]}, v{t[a]}, v{Gr+i+a}')
                for a in range(2): o.append(f'v_exp_f32 v{t[a]}, v{t[a]}')
                for a in range(2): o.append(f'v_mul_f32 v{Ur+i+a}, v{Ur+i+a}, v{Gr+i+a}')
                for a in range(2): o.append(f'v_fma_f32 v{t[a]}, v{t[a]}, v{CON+2}, v{CON+2}')
                for a in range(2): o.append(f'v_rcp_f32 v{t[a]}, v{t[a]}')
                o.append(f'v_nop')
                for a in range(2): o.append(f'v_mul_f32 v{Ur+i+a}, v{Ur+i+a}, v{t[a]}')
                o.append(f'v_cvt_pk_bf16_f32 v{Gr+i//2}, v{Ur+i}, v{Ur+i+1}')
        else:
            for i0 in range(0, 16, 8):
                idx = range(i0, i0 + 8, 2)
                T = lambda i: vr(TMP + (i % 8), 2)
                for i in idx: o.append(f'v_pk_mul_f32 {T(i)}, {vr(Gr+i,2)}, {vr(Gr+i,2)}')
                for i in idx: o.append(f'v_pk_fma_f32 {T(i)}, {T(i)}, {vr(CON,2)}, {vr(CON,2)} op_sel:[0,1,0] op_sel_hi:[1,1,0]')
                for i in idx: o.append(f'v_pk_mul_f32 {T(i)}, {T(i)}, {vr(Gr+i,2)}')
                for i in range(8): o.append(f'v_exp_f32 v{TMP+i}, v{TMP+i}')
                for i in idx: o.append(f'v_pk_mul_f32 {vr(Ur+i,2)}, {vr(Ur+i,2)}, {vr(Gr+i,2)}')
                for i in idx: o.append(f'v_pk_fma_f32 {T(i)}, {T(i)}, {vr(CON+2,2)}, {vr(CON+2,2)} op_sel_hi:[1,0,0]')
                for i in range(8): o.append(f'v_rcp_f32 v{TMP+i}, v{TMP+i}')
                for i in idx: o.append(f'v_pk_mul_f32 {vr(Ur+i,2)}, {vr(Ur+i,2)}, {T(i)}')
                for i in idx: o.append(f'v_cvt_pk_bf16_f32 v{Gr+i//2}, v{Ur+i}, v{Ur+i+1}')
        return o

    def res_init(self, acc):
        for i in range(8):
            self.I(f'v_lshlrev_b32 v{acc+2*i}, 16, v{RES+i}')
            self.I(f'v_and_b32 v{acc+2*i+1}, s{sMASKHI}, v{RES+i}')
    def exchange(self, own, oth, tmp, exbase, sb):
        I = self.I
        b = exbase // 65536 * 65536
        for q in range(4):
            I(f'ds_write_b128 v{vEXW}, {vr(oth+4*q,4)} offset:{exbase-b+q*1024}')
        self.barrier()
        for q in range(4):
            I(f'ds_read_b128 {vr(tmp+4*q,4)}, v{vEXR} offset:{exbase-b+q*1024}')
        for i in range(0, 16, 2):
            I(f'v_pk_add_f32 {vr(own+i,2)}, {vr(own+i,2)}, {vr(tmp+i,2)}')
        for i in range(8):
            I(f'v_cvt_pk_bf16_f32 v{RES+i}, v{own+2*i}, v{own+2*i+1}')
    def xstore(self, sfr, sst):
        I = self.I
        I(f'buffer_store_dwordx4 {vr(RES,4)}, v{vL0}, {WS}, s{sfr} offen sc1')
        I(f'buffer_store_dwordx4 {vr(RES+4,4)}, v{vL0}, {WS}, s{sfr} offen offset:1024 sc1')
        a, b = TMP, TMP + 1
        I(f'v_mov_b32 v{a}, 0'); I(f'v_mov_b32 v{b}, 0')
        for i in range(8):
            I(f'v_dot2c_f32_bf16 v{a}, s{sONES}, v{RES+i}')
            I(f'v_dot2c_f32_bf16 v{b}, v{RES+i}, v{RES+i}')
        I(f'v_mov_b32 v{a+2}, v{a}'); I(f'v_mov_b32 v{b+2}, v{b}')
        I(f'v_permlane32_swap_b32 v{a+2}, v{a}'); I(f'v_permlane32_swap_b32 v{b+2}, v{b}')
        I(f'v_pk_add_f32 {vr(a,2)}, {vr(a,2)}, {vr(a+2,2)}')
        I(f'buffer_store_dwordx2 {vr(a,2)}, v{vSTW}, {WS}, s{sst} offen sc1')

    def main(self):
        p = self.p; I = self.I
        KN = NAME + '_kernel'
        p.raw(f'.globl {KN}\n.p2align 8\n.type {KN},@function\n{KN}:')
        I('s_cmp_ge_u32 s2, 256'); p.branch('s_cbranch_scc1 L_end')
        I('s_load_dwordx2 s[8:9], s[0:1], 64')
        I('s_load_dwordx2 s[4:5], s[0:1], 80')
        I(f'v_readfirstlane_b32 s{sW}, v0')
        I('v_and_b32 v0, 63, v0')
        I(f's_mov_b32 s6, {WS_BYTES:#x}'); I('s_mov_b32 s7, 0x20000')
        I(f's_mov_b32 s10, {S*D*2:#x}'); I('s_mov_b32 s11, 0x20000')
        I(f's_lshr_b32 s{sW}, s{sW}, 6')
        I(f's_and_b32 s{sT0}, s2, 7'); I(f's_lshr_b32 s{sT1}, s2, 3')
        I(f's_lshr_b32 s{sJ}, s{sT1}, 1'); I(f's_and_b32 s{sT1}, s{sT1}, 1')
        I(f's_lshl_b32 s{sRB}, s{sT0}, 1'); I(f's_add_u32 s{sRB}, s{sRB}, s{sT1}')
        I(f's_mov_b32 s{sLAYER}, 0')
        I(f'v_lshlrev_b32 v{vL0}, 4, v0')
        I(f'v_add_u32 v{vL1}, 0x10000, v{vL0}'); I(f'v_add_u32 v{vL2}, 0x20000, v{vL0}')
        I(f's_mul_i32 s{sU0}, s{sJ}, 3'); I(f's_lshl_b32 s{sT0}, s{sJ}, 1'); I(f's_add_u32 s{sT0}, s{sT0}, 11')
        I(f's_cmp_lt_u32 s{sJ}, 11'); I(f's_cselect_b32 s{sU0}, s{sU0}, s{sT0}'); I(f's_cselect_b32 s{sHEAVY}, 1, 0')
        p.wait_hard(lg=0)
        I(f's_cmp_ge_u32 s{sW}, 4'); p.branch('s_cbranch_scc1 L_helper')
        self.compute()
        p.label('L_helper')
        self.helper()
        p.label('L_end')
        I('s_endpgm')

    def compute(self):
        p = self.p; I = self.I
        I(f's_lshl_b32 s{sRT}, s{sRB}, 2');
        I(f's_lshr_b32 s{sT0}, s{sJ}, 3'); I(f's_lshl_b32 s{sT0}, s{sT0}, 1')
        I(f's_and_b32 s{sT1}, s{sW}, 1'); I(f's_add_u32 s{sRT2}, s{sRT}, s{sT0}'); I(f's_add_u32 s{sRT2}, s{sRT2}, s{sT1}')
        I(f's_add_u32 s{sRT}, s{sRT}, s{sW}')
        I(f's_lshr_b32 s{sT2}, s{sW}, 1')
        I(f's_and_b32 s{sT3}, s{sJ}, 7'); I(f's_lshl_b32 s{sCT}, s{sT3}, 1'); I(f's_add_u32 s{sCT}, s{sCT}, s{sT2}')
        def lin(dst, base, terms):
            first = True
            for sreg, mul in terms:
                tgt = dst if first else sT5
                I(f's_mul_i32 s{tgt}, s{sreg}, {mul}')
                if not first: I(f's_add_u32 s{dst}, s{dst}, s{sT5}')
                first = False
            I(f's_add_u32 s{dst}, s{dst}, {base:#x}')
        B = LB0
        lin(sXIN, B + XIN, [(sRT, 32768)]); lin(sSTIN, B + STIN, [(sRT, 4096)]); lin(sFXC, B + F_XC, [(sRT, FL)])
        lin(sKVR, B + KVP, [(sJ, 4 * 16 * KVS), (sW, 16 * KVS)])
        lin(sFAR, B + F_AR, [(sJ, 2 * FL), (sT2, FL)])
        lin(sOFW, B + OF, [(sRT, 32768), (sJ, 2048)])
        I(f's_lshr_b32 s{sT4}, s{sJ}, 3')
        lin(sFOCW, B + F_OC, [(sRT, 2 * FL), (sT4, FL)])
        lin(sFOCR, B + F_OC, [(sRT2, 2 * FL), (sT2, FL)])
        lin(sOFR, B + OF, [(sRT2, 32768), (sT2, 16384)])
        lin(sX1W, B + X1F, [(sRT2, 32768), (sCT, 2048)])
        lin(sST1W, B + ST1, [(sRT2, 4096), (sCT, 256)])
        lin(sFX1W, B + F_X1, [(sRT2, FL)]); lin(sFX1R, B + F_X1, [(sRT, FL)])
        lin(sX1R, B + X1F, [(sRT, 32768)]); lin(sST1R, B + ST1, [(sRT, 4096)])
        lin(sHFW, B + HF, [(sRT, 86 * 1024), (sU0, 2048)])
        lin(sFHCW, B + F_HC, [(sRT, FL)]); lin(sFHCR, B + F_HC, [(sRT2, FL)])
        lin(sHFR, B + HF, [(sRT2, 86 * 1024), (sT2, 43 * 1024)])
        lin(sXNW, B + LBS + XIN, [(sRT2, 32768), (sCT, 2048)])
        lin(sSTNW, B + LBS + STIN, [(sRT2, 4096), (sCT, 256)])
        lin(sFXNW, B + LBS + F_XC, [(sRT2, FL)])
        I(f's_sub_u32 s{sT0}, s{sXNW}, {LBS:#x}')
        I(f'buffer_load_dwordx4 {vr(RES,4)}, v{vL0}, {WS}, s{sT0} offen')
        I(f'buffer_load_dwordx4 {vr(RES+4,4)}, v{vL0}, {WS}, s{sT0} offen offset:1024')
        I(f's_mov_b32 s{sHALF}, 0'); I(f's_mov_b32 s{sHALF+1}, -1')
        I(f's_mov_b32 s{sONES}, 0x3f803f80'); I(f's_mov_b32 s{sSELLO}, 0x3f80'); I(f's_mov_b32 s{sSELHI}, 0x3f800000')
        I(f's_mov_b32 s{sMASKHI}, 0xffff0000')
        t0, t1, t2 = TMP, TMP + 1, TMP + 2
        I(f'v_lshlrev_b32 v{vL8}, 3, v0')
        I(f'v_mov_b32 v{t0}, 0x80000000')
        I(f'v_cndmask_b32 v{vSTW}, v{vL8}, v{t0}, s[{sHALF}:{sHALF+1}]')
        I(f'v_and_b32 v{t1}, 31, v0')
        I(f'v_lshrrev_b32 v{t2}, 5, v0')
        I(f'v_mul_u32_u24 v{vAR}, 320, v{t2}')
        I(f'v_lshl_add_u32 v{vAR}, v{t1}, 4, v{vAR}')
        I(f'v_cmp_gt_u32 vcc, 20, v{t1}')
        I(f'v_cndmask_b32 v{vAR}, v{t0}, v{vAR}, vcc')
        I(f'v_min_u32 v{vKVA}, 16, v{t1}')
        I(f'v_lshl_add_u32 v{vKVA}, v{t2}, 5, v{vKVA}')
        I(f'v_lshlrev_b32 v{vKVA}, 4, v{vKVA}')
        I(f'v_add_u32 v{vKVA}, {L_KVA}, v{vKVA}')
        I(f'v_lshrrev_b32 v{vPH}, 1, v{t1}'); I(f'v_and_b32 v{vPH}, 3, v{vPH}')
        I(f'v_lshlrev_b32 v{t0}, 1, v{t2}'); I(f'v_xor_b32 v{vPH}, v{vPH}, v{t0}')
        I(f'v_lshlrev_b32 v{vPH}, 4, v{vPH}')
        I(f'v_lshl_add_u32 v{vPH}, v{t1}, 6, v{vPH}')
        I(f's_lshl_b32 s{sT0}, s{sW}, 11'); I(f's_add_u32 s{sT0}, s{sT0}, {L_SCRT}')
        I(f'v_add_u32 v{vPH}, s{sT0}, v{vPH}')
        I(f'v_lshlrev_b32 v{vEXT}, 3, v{t1}'); I(f'v_add_u32 v{vEXT}, {RESV}, v{vEXT}')
        I(f'v_lshlrev_b32 v{vOUT}, 10, v{t1}'); I(f'v_lshl_add_u32 v{vOUT}, v{t2}, 5, v{vOUT}')
        I(f's_lshl_b32 s{sT0}, s{sRT2}, 15'); I(f's_lshl_b32 s{sT1}, s{sCT}, 6'); I(f's_add_u32 s{sT0}, s{sT0}, s{sT1}')
        I(f'v_add_u32 v{vOUT}, s{sT0}, v{vOUT}')
        I(f'v_mov_b32 v{BEXT+2}, 0'); I(f'v_mov_b32 v{BEXT+3}, 0')
        p.wait(vm=0)
        p.label('L_layer')
        self.ts(0)
        self.poll(sFXC, 16)
        self.ts(1)
        ST = ACC + 48
        self.loadstats(ST, sSTIN)
        self.loadfrags(XB, sXIN, [(XB + 4 * k, k) for k in range(32)])
        self.barrier()
        aK, aV = ACC, ACC + 16
        steps = []
        for ks in range(32):
            steps.append((aK, (lambda d, a=ks * 2048: self.rdfrag(d, a)), XB + 4 * ks, ks == 0))
            steps.append((aV, (lambda d, a=ks * 2048 + 1024: self.rdfrag(d, a)), XB + 4 * ks, ks == 0))
        steps.append((aK, (lambda d: I(f'ds_read_b64 {vr(d,2)}, v{vEXT} offset:0')), BEXT, False))
        steps.append((aV, (lambda d: I(f'ds_read_b64 {vr(d,2)}, v{vEXT} offset:256')), BEXT, False))
        self.gemm(steps, fill=self.stats_ops(ST, 1), fill_per=2)
        self.ts(2)
        self.rdfrag(AF, L_APHI); self.rdfrag(AF + 4, L_APHI + 1024)
        P0, P1 = ACC + 32, ACC + 48
        self.feat(aK, P0, P1)
        for i in range(0, 16, 2):
            I(f'v_pk_mul_f32 {vr(aV+i,2)}, {vr(aV+i,2)}, {vr(CON+2,2)} op_sel_hi:[1,0]')
        for i in range(8): I(f'v_cvt_pk_bf16_f32 v{aV+i}, v{aV+2*i}, v{aV+2*i+1}')
        for i in range(4): I(f'v_mov_b32 v{aV+8+i}, s{sONES}')
        I(f'v_cndmask_b32 v{TMP}, 0, 48, s[{sHALF}:{sHALF+1}]')
        I(f'v_xor_b32 v{TMP}, v{TMP}, v{vPH}')
        I(f'v_xor_b32 v{TMP+1}, 32, v{TMP}')
        I(f'ds_write_b128 v{TMP}, {vr(aV,4)} offset:16384')
        I(f'ds_write_b128 v{TMP}, {vr(aV+4,4)} offset:24576')
        I(f'ds_write_b128 v{TMP+1}, {vr(aV+8,4)} offset:16384')
        I(f'ds_write_b128 v{TMP+1}, {vr(aV+8,4)} offset:24576')
        p.wait(lg=0)
        self.softmax2(P0, P1)
        I(f'v_xor_b32 v{TMP}, 16, v{vPH}')
        I(f'ds_write_b128 v{vPH}, {vr(P0,4)}'); I(f'ds_write_b128 v{TMP}, {vr(P0+4,4)}')
        I(f'ds_write_b128 v{vPH}, {vr(P1,4)} offset:8192'); I(f'ds_write_b128 v{TMP}, {vr(P1+4,4)} offset:8192')
        self.barrier()
        self.ts(3)
        aQ = ACC
        steps = [(aQ, (lambda d, a=16 * G + ks * 1024: self.rdfrag(d, a)), XB + 4 * ks, ks == 0) for ks in range(32)]
        steps.append((aQ, (lambda d: I(f'ds_read_b64 {vr(d,2)}, v{vEXT} offset:512')), BEXT, False))
        self.gemm(steps)
        self.rdfrag(AF, L_APHI); self.rdfrag(AF + 4, L_APHI + 1024)
        self.feat(aQ, P0, P1)
        self.softmax2(P0, P1)
        self.ts(4)
        self.poll(sFAR, 16)
        self.ts(5)
        for b in range(16):
            off = b * KVS
            s = sKVR
            if off >= 4096:
                q = off // 4096
                s = sT0 + (q & 1)
                if (b - 1) * KVS // 4096 != q: I(f's_add_u32 s{s}, s{sKVR}, {q*4096}')
                off -= q * 4096
            I(f'buffer_load_dwordx4 {vr(XB+4*b,4)}, v{vAR}, {WS}, s{s} offen offset:{off} sc1')
        R = XB + 64
        for i in range(8): I(f'v_mov_b32 v{R+i}, 0')
        for b in range(16):
            for i in range(4):
                I(f'v_dot2c_f32_bf16 v{R+2*i}, s{sSELLO}, v{XB+4*b+i}')
                I(f'v_dot2c_f32_bf16 v{R+2*i+1}, s{sSELHI}, v{XB+4*b+i}')
        for i in range(4): I(f'v_cvt_pk_bf16_f32 v{R+i}, v{R+2*i}, v{R+2*i+1}')
        I(f's_lshl_b32 s{sT0}, s{sW}, 10')
        I(f'v_add_u32 v{TMP}, s{sT0}, v{vL2}')
        I(f'ds_write_b128 v{TMP}, {vr(R,4)} offset:{L_KVA-131072}')
        self.barrier()
        self.ts(6)
        for q in range(4): I(f'ds_read_b128 {vr(AF+4*q,4)}, v{vKVA} offset:{q*1024}')
        O0, O1 = ACC, ACC + 16
        I(f'v_mfma_f32_32x32x16_bf16 {vr(O0,16)}, {vr(AF,4)}, {vr(P0,4)}, 0')
        I(f'v_mfma_f32_32x32x16_bf16 {vr(O1,16)}, {vr(AF+8,4)}, {vr(P1,4)}, 0')
        I(f'v_mfma_f32_32x32x16_bf16 {vr(O0,16)}, {vr(AF+4,4)}, {vr(P0+4,4)}, {vr(O0,16)}')
        I(f'v_mfma_f32_32x32x16_bf16 {vr(O1,16)}, {vr(AF+12,4)}, {vr(P1+4,4)}, {vr(O1,16)}')
        for O in (O0, O1):
            I(f'v_add_f32 v{O+8}, {f32(1e-6)}, v{O+8}')
            I(f'v_rcp_f32 v{O+8}, v{O+8}')
            for i in range(0, 8, 2): I(f'v_pk_mul_f32 {vr(O+i,2)}, {vr(O+i,2)}, {vr(O+8,2)} op_sel_hi:[1,0]')
            for i in range(4): I(f'v_cvt_pk_bf16_f32 v{O+i}, v{O+2*i}, v{O+2*i+1}')
            I(f'buffer_store_dwordx4 {vr(O,4)}, v{vL0}, {WS}, s{sOFW} offen offset:{0 if O==O0 else 1024} sc1')
        self.signal(sFOCW)
        self.ts(7)
        own, oth = ACC, ACC + 16
        self.res_init(own)
        def setown(base):
            I(f's_lshr_b32 s{sT2}, s{sW}, 1')
            I(f's_mul_i32 s{sT3}, s{sT2}, 3072'); I(f's_add_u32 s{sT3}, s{sT3}, {base}')
            I(f's_lshl_b32 s{sT4}, s{sT2}, 10'); I(f's_add_u32 s{sT4}, s{sT4}, {base+1024}')
            I(f'v_add_u32 v{vOWN}, s{sT3}, v{vL0}'); I(f'v_add_u32 v{vOTH}, s{sT4}, v{vL0}')
        def setex(exbase):
            b = exbase // 65536 * 65536
            I(f's_lshl_b32 s{sT3}, s{sW}, 12'); I(f's_add_u32 s{sT3}, s{sT3}, {b}')
            I(f's_xor_b32 s{sT4}, s{sT3}, 8192')
            I(f'v_add_u32 v{vEXW}, s{sT3}, v{vL0}'); I(f'v_add_u32 v{vEXR}, s{sT4}, v{vL0}')
        setown(0); setex(L_EX2)
        self.poll(sFOCR, 8)
        self.ts(8)
        self.loadfrags(XB, sOFR, [(XB + 4 * k, k) for k in range(16)])
        steps = []
        for g in range(16):
            steps.append((own, (lambda d, o=g * G: I(f'ds_read_b128 {vr(d,4)}, v{vOWN} offset:{o}')), XB + 4 * g, False))
            steps.append((oth, (lambda d, o=g * G: I(f'ds_read_b128 {vr(d,4)}, v{vOTH} offset:{o}')), XB + 4 * g, g == 0))
        self.gemm(steps)
        self.ts(9)
        self.exchange(own, oth, ACC + 32, L_EX2, None)
        self.xstore(sX1W, sST1W)
        self.signal(sFX1W)
        self.ts(10)
        self.poll(sFX1R, 16)
        self.ts(11)
        self.loadstats(ST, sST1R)
        self.loadfrags(XB, sX1R, [(XB + 4 * k, k) for k in range(32)])
        def unit(u, region, fill, fill_per, last_barrier=True):
            aG, aU = ACC + 32 * (u & 1), ACC + 32 * (u & 1) + 16
            steps = []
            for ks in range(32):
                steps.append((aG, (lambda d, a=region + ks * 2048: self.rdfrag(d, a)), XB + 4 * ks, ks == 0))
                steps.append((aU, (lambda d, a=region + ks * 2048 + 1024: self.rdfrag(d, a)), XB + 4 * ks, ks == 0))
            steps.append((aG, (lambda d: I(f'ds_read_b64 {vr(d,2)}, v{vEXT} offset:{1024+u*512}')), BEXT, False))
            steps.append((aU, (lambda d: I(f'ds_read_b64 {vr(d,2)}, v{vEXT} offset:{1024+u*512+256}')), BEXT, False))
            self.gemm(steps, fill=fill, fill_per=fill_per, at={64: self.barrier})
        def hstore(u):
            Gr = ACC + 32 * (u & 1)
            s = sHFW
            if u == 2:
                s = sT0
            o = (u % 2) * 2048
            return ([f's_add_u32 s{sT0}, s{sHFW}, 4096'] if u == 2 else []) + [
                f'buffer_store_dwordx4 {vr(Gr,4)}, v{vL0}, {WS}, s{s} offen offset:{o} sc1',
                f'buffer_store_dwordx4 {vr(Gr+4,4)}, v{vL0}, {WS}, s{s} offen offset:{o+1024} sc1']
        def gel(u, packed):
            return self.gelu_ops(ACC + 32 * (u & 1), ACC + 32 * (u & 1) + 16, packed) + hstore(u)
        unit(0, 16 * G, self.stats_ops(ST, 3), 2)
        self.ts(12)
        unit(1, 0, gel(0, False), 3)
        self.ts(13)
        I(f's_cmp_eq_u32 s{sHEAVY}, 0'); p.branch('s_cbranch_scc1 L_light')
        snap = p.snapshot()
        unit(2, 16 * G, gel(1, False), 3)
        for t in gel(2, True): I(t)
        p.wait(vm=0)
        p.branch('s_branch L_p3done')
        p.label('L_light')
        p.restore(snap)
        self.barrier()
        for t in gel(1, True): I(t)
        p.wait(vm=0)
        p.label('L_p3done')
        self.signal(sFHCW)
        self.ts(14)
        self.res_init(own)
        setex(L_EX4)
        self.poll(sFHCR, 16)
        self.ts(15)
        self.loadfrags(XB, sHFR, [(XB + 4 * k, k) for k in range(32)])
        self.barrier()
        steps = []; at = {}
        cur = None
        for g in range(43):
            a = w4_slot(g) * G
            base = a // 65536 * 65536
            if base != cur:
                cur = base
                at[('rd', 2 * g)] = (lambda b=base: setown(b))
            steps.append((own, (lambda d, o=a - base: I(f'ds_read_b128 {vr(d,4)}, v{vOWN} offset:{o}')), XB + 4 * (g % 32), False))
            steps.append((oth, (lambda d, o=a - base: I(f'ds_read_b128 {vr(d,4)}, v{vOTH} offset:{o}')), XB + 4 * (g % 32), g == 0))
        for g in range(1, 12):
            at[2 * g] = (lambda g=g: self.loadfrags(XB, sHFR, [(XB + 4 * (g - 1), 32 + g - 1)]))
        f20 = at[20]
        at[20] = lambda: (f20(), I('s_barrier'))
        f76 = at[('rd', 76)]
        at[('rd', 76)] = lambda: (I('s_barrier'), f76())
        self.gemm(steps, at=at)
        self.ts(16)
        self.exchange(own, oth, ACC + 32, L_EX4, None)
        I(f's_cmp_eq_u32 s{sLAYER}, 1'); p.branch('s_cbranch_scc1 L_final')
        self.xstore(sXNW, sSTNW)
        self.signal(sFXNW)
        self.ts(17)
        self.ts_flush(18)
        for s in LAYER_SREGS: I(f's_add_u32 s{s}, s{s}, {LBS:#x}')
        I(f's_add_u32 s{sLAYER}, s{sLAYER}, 1')
        p.wait(vm=0)
        p.branch('s_branch L_layer')
        p.label('L_final')
        I(f'buffer_store_dwordx4 {vr(RES,4)}, v{vOUT}, {OUT}, 0 offen')
        I(f'buffer_store_dwordx4 {vr(RES+4,4)}, v{vOUT}, {OUT}, 0 offen offset:16')
        p.wait(vm=0)
        self.ts(17)
        self.ts_flush(18)
        I('s_endpgm')

    def dma(self, sbase, srcg, dstg, lanes=None):
        I = self.I
        I(f's_add_u32 s{sT0}, s{sbase}, {srcg*G}')
        I(f's_add_u32 m0, s{sHOFF}, {dstg*G}')
        for q in range(4):
            I(f'buffer_load_dwordx4 v{vL0}, {WS}, s{sT0} offen offset:{q*1024} lds')
    def dma_range(self, sbase, src0, dst0, n, nw=4):
        assert n % nw == 0
        for k in range(0, n, nw): self.dma(sbase, src0 + k, dst0 + k)

    def helper(self):
        p = self.p; I = self.I
        p.vm = []; p.lg = []
        I(f's_sub_u32 s{sT2}, s{sW}, 4')
        I(f's_lshl_b32 s{sHOFF}, s{sT2}, 12')
        I(f's_mul_i32 s{sW1}, s{sJ}, {96*1024}'); I(f's_add_u32 s{sW1}, s{sW1}, s{sHOFF}')
        if W1F: I(f's_add_u32 s{sW1}, s{sW1}, {W1F:#x}')
        self.dma_range(sW1, 0, 0, 24)
        I(f's_and_b32 s{sT3}, s{sJ}, 7')
        I(f's_lshl_b32 s{sW2}, s{sT3}, 16'); I(f's_add_u32 s{sW2}, s{sW2}, s{sHOFF}'); I(f's_add_u32 s{sW2}, s{sW2}, {W2F:#x}')
        I(f's_lshl_b32 s{sW3}, s{sU0}, 16'); I(f's_add_u32 s{sW3}, s{sW3}, s{sHOFF}'); I(f's_add_u32 s{sW3}, s{sW3}, {W3F:#x}')
        I(f's_mul_i32 s{sW4}, s{sT3}, {43*G}'); I(f's_add_u32 s{sW4}, s{sW4}, s{sHOFF}'); I(f's_add_u32 s{sW4}, s{sW4}, {W4F:#x}')
        I(f's_lshl_b32 s{sT0}, s{sJ}, 10'); I(f's_add_u32 s{sT0}, s{sT0}, {EXT1:#x}')
        I(f's_mov_b32 m0, {L_EXT1}')
        I(f'buffer_load_dwordx4 v{vL0}, {WS}, s{sT0} offen lds')
        I(f's_lshl_b32 s{sT0}, s{sU0}, 9'); I(f's_add_u32 s{sT0}, s{sT0}, {EXT3:#x}')
        I(f's_mov_b32 m0, {L_EXT3}')
        I(f'buffer_load_dwordx4 v{vL0}, {WS}, s{sT0} offen lds')
        I(f'buffer_load_dwordx4 v{vL0}, {WS}, s{sT0} offen offset:1024 lds')
        I(f's_lshl_b32 s{sT0}, s{sJ}, 11'); I(f's_add_u32 s{sT0}, s{sT0}, {APHI:#x}')
        I(f's_mov_b32 m0, {L_APHI}')
        I(f'buffer_load_dwordx4 v{vL0}, {WS}, s{sT0} offen lds')
        I(f'buffer_load_dwordx4 v{vL0}, {WS}, s{sT0} offen offset:1024 lds')
        I(f's_lshl_b32 s{sT0}, s{sJ}, 1'); I(f's_add_u32 s{sT0}, s{sT0}, s{sT2}')
        I(f's_mul_i32 s{sKVW}, s{sT0}, {32*KVS}'); I(f's_mul_i32 s{sT1}, s{sRB}, {KVS}'); I(f's_add_u32 s{sKVW}, s{sKVW}, s{sT1}')
        I(f's_add_u32 s{sKVW}, s{sKVW}, {LB0+KVP:#x}')
        I(f's_mul_i32 s{sFARW}, s{sT0}, {FL}'); I(f's_add_u32 s{sFARW}, s{sFARW}, {LB0+F_AR:#x}')
        t0, t1, t2, t3 = 20, 21, 22, 23
        vA0, vA1, vB0, vB1 = 24, 25, 26, 27
        I(f'v_mov_b32 v{t0}, 0x80000000')
        I(f'v_and_b32 v{t1}, 31, v0'); I(f'v_lshrrev_b32 v{t2}, 5, v0')
        I(f'v_mul_u32_u24 v{vAR}, 320, v{t2}')
        I(f'v_lshl_add_u32 v{vAR}, v{t1}, 4, v{vAR}')
        I(f'v_cmp_gt_u32 vcc, 20, v{t1}')
        I(f'v_cndmask_b32 v{vAR}, v{t0}, v{vAR}, vcc')
        r_, c_, g_ = 28, 29, 30
        I(f'v_bfe_u32 v{r_}, v0, 2, 2'); I(f'v_and_b32 v{c_}, 3, v0'); I(f'v_bfe_u32 v{g_}, v0, 4, 1')
        I(f'v_lshl_add_u32 v{t0}, v{t2}, 3, v{r_}')
        I(f'v_lshlrev_b32 v{t0}, 6, v{t0}')
        I(f'v_lshrrev_b32 v{t1}, 1, v{c_}'); I(f'v_lshl_add_u32 v{t0}, v{t1}, 3, v{t0}')
        I(f's_lshl_b32 s{sT0}, s{sT2}, 13'); I(f's_add_u32 s{sT0}, s{sT0}, {L_SCRT}')
        I(f'v_add_u32 v{t0}, s{sT0}, v{t0}')
        I(f'v_lshrrev_b32 v{t3}, 1, v{r_}')
        I(f'v_and_b32 v{t1}, 1, v{c_}')
        I(f'v_lshl_add_u32 v{vA0}, v{t1}, 1, v{g_}')
        I(f'v_lshl_add_u32 v{vB0}, v{g_}, 1, v{t1}')
        I(f'v_xor_b32 v{vA0}, v{vA0}, v{t3}'); I(f'v_xor_b32 v{vB0}, v{vB0}, v{t3}')
        I(f'v_lshl_add_u32 v{vA0}, v{vA0}, 4, v{t0}'); I(f'v_lshl_add_u32 v{vB0}, v{vB0}, 4, v{t0}')
        I(f'v_xor_b32 v{vA1}, 32, v{vA0}'); I(f'v_xor_b32 v{vB1}, 32, v{vB0}')
        p.label('L_hlayer')
        self.ts(0)
        p.wait_hard(vm=0); I('s_barrier')
        self.ts(1)
        I('s_barrier')
        self.ts(2)
        I(f's_cmp_ge_u32 s{sW}, 6'); p.branch('s_cbranch_scc1 L_hdma2')
        A = 32; Bq = 64; Dk = 96
        for ks in range(8):
            I(f'ds_read_b64_tr_b16 {vr(A+4*ks,2)}, v{vA0} offset:{ks*1024}')
            I(f'ds_read_b64_tr_b16 {vr(A+4*ks+2,2)}, v{vA1} offset:{ks*1024+256}')
            I(f'ds_read_b64_tr_b16 {vr(Bq+4*ks,2)}, v{vB0} offset:{16384+ks*1024}')
            I(f'ds_read_b64_tr_b16 {vr(Bq+4*ks+2,2)}, v{vB1} offset:{16384+ks*1024+256}')
            if ks >= 2:
                k = ks - 2
                I(f'v_mfma_f32_32x32x16_bf16 {vr(Dk,16)}, {vr(A+4*k,4)}, {vr(Bq+4*k,4)}, {"0" if k==0 else vr(Dk,16)}')
        for k in (6, 7):
            I(f'v_mfma_f32_32x32x16_bf16 {vr(Dk,16)}, {vr(A+4*k,4)}, {vr(Bq+4*k,4)}, {vr(Dk,16)}')
        for i in range(8): I(f'v_cvt_pk_bf16_f32 v{Dk+i}, v{Dk+2*i}, v{Dk+2*i+1}')
        I(f's_add_u32 s{sT0}, s{sKVW}, {16*KVS}')
        I(f'buffer_store_dwordx4 {vr(Dk,4)}, v{vAR}, {WS}, s{sKVW} offen sc1')
        I(f'buffer_store_dwordx4 {vr(Dk+4,4)}, v{vAR}, {WS}, s{sT0} offen sc1')
        self.signal(sFARW)
        p.branch('s_branch L_hb3')
        p.label('L_hdma2')
        p.vm = []
        for k in range(0, 16, 2):
            I(f's_add_u32 s{sT0}, s{sW2}, {(k-2)*G & 0xffffffff:#x}')
            I(f's_add_u32 m0, s{sHOFF}, {(k-2)*G & 0xffffffff:#x}')
            for q in range(4): I(f'buffer_load_dwordx4 v{vL0}, {WS}, s{sT0} offen offset:{q*1024} lds')
        p.label('L_hb3')
        self.ts(3)
        p.wait_hard(vm=0); I('s_barrier')
        self.ts(4)
        self.dma_range(sW3, 0, 16, 16)
        p.wait(vm=0); I('s_barrier')
        self.ts(5)
        self.dma_range(sW3, 16, 0, 16)
        p.wait(vm=0); I('s_barrier')
        self.ts(6)
        I(f's_cmp_eq_u32 s{sHEAVY}, 0'); p.branch('s_cbranch_scc1 L_hlight')
        self.dma_range(sW3, 32, 16, 16)
        p.label('L_hlight')
        p.vm = []
        self.dma_range(sW4, 0, 32, 4)
        I(f's_cmp_ge_u32 s{sW}, 6'); p.branch('s_cbranch_scc1 L_h6')
        self.dma(sW4, 4, 36)
        p.label('L_h6')
        p.wait_hard(vm=0); I('s_barrier')
        self.ts(7)
        self.dma_range(sW4, 14, 0, 16)
        I('s_barrier')
        self.ts(8)
        self.dma_range(sW4, 6, 24, 8)
        self.dma_range(sW4, 30, 16, 8)
        p.wait(vm=0); I('s_barrier')
        self.ts(9)
        I('s_barrier')
        self.dma_range(sW4, 38, 32, 4)
        I(f's_cmp_ge_u32 s{sW}, 5'); p.branch('s_cbranch_scc1 L_h7')
        self.dma(sW4, 42, 36)
        p.label('L_h7')
        p.wait_hard(vm=0); I('s_barrier')
        self.ts(10)
        I('s_barrier')
        self.ts(11)
        self.ts_flush(12)
        I(f's_cmp_eq_u32 s{sLAYER}, 1'); p.branch('s_cbranch_scc1 L_end')
        self.dma_range(sW1, 0, 0, 24)
        I(f's_add_u32 s{sKVW}, s{sKVW}, {LBS:#x}'); I(f's_add_u32 s{sFARW}, s{sFARW}, {LBS:#x}')
        I(f's_add_u32 s{sLAYER}, s{sLAYER}, 1')
        p.branch('s_branch L_hlayer')

def desc(name, vg=256):
    return f""".p2align 6
.amdhsa_kernel {name}
  .amdhsa_next_free_vgpr {vg}
  .amdhsa_next_free_sgpr 102
  .amdhsa_accum_offset {vg}
  .amdhsa_group_segment_fixed_size 0
  .amdhsa_kernarg_size 88
  .amdhsa_user_sgpr_count 2
  .amdhsa_user_sgpr_kernarg_segment_ptr 1
  .amdhsa_system_sgpr_workgroup_id_x 1
.end_amdhsa_kernel
"""
if __name__ == '__main__':
    out = [a for a in sys.argv[1:] if not a.startswith('--')][0]
    ref = open(f'cdna_kernels/{NAME}.s.ref').read().split('\n')
    hdr = [l for l in ref if l.startswith(';') and '@launch' not in l]
    k = K(); k.main()
    import prep
    withprep = '--noprep' not in sys.argv
    txt = '\n'.join(hdr) + '\n'
    if withprep:
        txt += f'; @launch kernel=prep_kernel grid=({prep.GRID},1,1) block=(256,1,1) lds={prep.LDS}\n'
    txt += f'; @launch kernel={NAME}_kernel grid=(256,1,1) block=(512,1,1) lds={LDS_BYTES}\n'
    txt += '.amdgcn_target "amdgcn-amd-amdhsa--gfx950"\n.text\n' + k.p.text()
    if withprep: txt += prep.gen()
    txt += '.section .rodata,"a"\n' + desc(NAME + '_kernel')
    if withprep: txt += desc('prep_kernel', 128)
    open(out, 'w').write(txt)
    print(k.p.stats)
```

```python
import re

def regs_of(tok):
    tok = tok.strip()
    tok = re.sub(r'^-', '', tok)
    m = re.match(r'^(abs|neg)\((.*)\)$', tok)
    if m: tok = m.group(2)
    tok = tok.strip('|')
    m = re.match(r'^([vsa])\[(\d+):(\d+)\]$', tok)
    if m:
        return [f"{m.group(1)}{i}" for i in range(int(m.group(2)), int(m.group(3)) + 1)]
    if re.match(r'^[vsa]\d+$', tok): return [tok]
    if tok == 'vcc': return ['vcc_lo', 'vcc_hi']
    if tok == 'exec': return ['exec_lo', 'exec_hi']
    if tok in ('vcc_lo', 'vcc_hi', 'exec_lo', 'exec_hi', 'm0', 'scc'): return [tok]
    return []

TRANS = ('v_exp_f32', 'v_log_f32', 'v_rcp_f32', 'v_rsq_f32', 'v_sqrt_f32', 'v_sin_f32', 'v_cos_f32')

class Ins:
    __slots__ = ('text', 'op', 'dst', 'src', 'kind', 'srcC', 'tag')
    def __init__(self, text, tag=None):
        self.text = text
        self.tag = tag
        body = text.split(';')[0].strip()
        parts = body.split(None, 1)
        self.op = op = parts[0]
        rest = parts[1] if len(parts) > 1 else ''
        ops = [o.strip() for o in rest.split(',')] if rest else []
        joined = []
        depth = 0
        cur = ''
        for ch in rest:
            if ch == '[' or ch == '(': depth += 1
            if ch == ']' or ch == ')': depth -= 1
            if ch == ',' and depth == 0:
                joined.append(cur.strip()); cur = ''
            else:
                cur += ch
        if cur.strip(): joined.append(cur.strip())
        ops = joined
        mods = ''
        if ops:
            last = ops[-1].split()
            ops[-1] = last[0]
            mods = ' '.join(last[1:])
        R = [regs_of(o) for o in ops]
        flat = lambda l: [r for x in l for r in x]
        self.srcC = []
        dst, src = [], []
        if op.startswith('v_mfma'):
            kind = 'mfma'; dst = R[0]; src = flat(R[1:]); self.srcC = R[3]
        elif op.startswith('v_cmp'):
            kind = 'valu'; dst = R[0]; src = flat(R[1:])
            if op.startswith('v_cmpx'): dst = dst + ['exec_lo', 'exec_hi']
        elif op.startswith('v_permlane') and 'swap' in op:
            kind = 'perm'; dst = flat(R); src = flat(R)
        elif op.startswith('v_readfirstlane') or op.startswith('v_readlane'):
            kind = 'rdlane'; dst = R[0]; src = flat(R[1:])
        elif op.startswith('v_dot2c') or op.startswith('v_dot2'):
            kind = 'dot'; dst = R[0]; src = flat(R[1:]) + (R[0] if 'dot2c' in op else [])
            self.srcC = R[0] if 'dot2c' in op else R[3]
        elif op.startswith('v_fmac') or op.startswith('v_pk_fmac'):
            kind = 'valu'; dst = R[0]; src = flat(R)
        elif op.startswith('v_cndmask'):
            kind = 'valu'; dst = R[0]; src = flat(R[1:])
            if len(ops) == 3: src += ['vcc_lo', 'vcc_hi']
        elif op.startswith('v_add_co') or op.startswith('v_sub_co') or op.startswith('v_addc_co'):
            kind = 'valu'; dst = R[0] + R[1]; src = flat(R[2:])
        elif op == 'v_nop':
            kind = 'valu'
        elif op.startswith('v_'):
            kind = 'trans' if op.replace('_e32', '').replace('_e64', '') in TRANS else 'valu'
            dst = R[0]; src = flat(R[1:])
            if 'dpp' in op or 'row_' in mods or 'quad_perm' in mods: kind = 'dpp'; src += dst
        elif op.startswith('ds_read') or op.startswith('ds_bpermute') or op.startswith('ds_swizzle'):
            kind = 'ds'; dst = R[0]; src = flat(R[1:])
        elif op.startswith('ds_add_rtn'):
            kind = 'ds'; dst = R[0]; src = flat(R[1:])
        elif op.startswith('ds_write') or op.startswith('ds_add'):
            kind = 'ds'; src = flat(R)
        elif op.startswith('buffer_load') or op.startswith('global_load'):
            kind = 'vmem'
            if ' lds' in (' ' + mods) or 'load_lds' in op:
                src = flat(R) + ['m0']; kind = 'vmem'
                self.tag = self.tag
            else:
                dst = R[0]; src = flat(R[1:])
        elif op.startswith('buffer_store') or op.startswith('global_store'):
            kind = 'vmem'; src = flat(R)
        elif op.startswith('buffer_atomic') or op.startswith('global_atomic'):
            kind = 'vmem'; src = flat(R)
            if 'sc0' in mods.split(): dst = R[0]
        elif op.startswith('s_load') or op.startswith('s_memtime') or op.startswith('s_memrealtime'):
            kind = 'smem'; dst = R[0]; src = flat(R[1:])
        elif op.startswith('s_cmp') or op.startswith('s_bitcmp'):
            kind = 'salu'; dst = ['scc']; src = flat(R)
        elif op in ('s_waitcnt', 's_nop', 's_barrier', 's_endpgm', 's_sleep', 's_setprio', 's_branch') or op.startswith('s_cbranch'):
            kind = 'ctl'
        elif op.startswith('s_'):
            kind = 'salu'; dst = R[0] + ['scc']; src = flat(R[1:])
            if 'saveexec' in op: dst += ['exec_lo', 'exec_hi']; src += ['exec_lo', 'exec_hi']
            if op.startswith('s_cselect') or op.startswith('s_addc'): src += ['scc']
            if op.startswith('s_mov') or op.startswith('s_cselect') or op.startswith('s_getreg') or op.startswith('s_getpc') or op.startswith('s_mul_i32') or op.startswith('s_mul_hi'):
                dst = R[0]
            if op.startswith('s_addk') or op.startswith('s_mulk'): src += R[0]
        else:
            raise ValueError('unknown op ' + text)
        self.kind = kind; self.dst = dst; self.src = src

class Prog:
    def __init__(self):
        self.lines = []
        self.pos = 0
        self.lastw = {}
        self.mfma_c = {}
        self.store_data = {}
        self.vm = []
        self.lg = []
        self.nid = 0
        self.stats = {'nops': 0, 'ins': 0}
    def raw(self, text):
        self.lines.append(text)
    def comment(self, text):
        self.lines.append('  ; ' + text)
    def _emit(self, text, n=1):
        self.lines.append('  ' + text); self.pos += n; self.stats['ins'] += 1
    def nop(self, n):
        while n > 0:
            k = min(n, 16)
            self._emit(f's_nop {k-1}', k); self.stats['nops'] += k
            n -= k
    def wait(self, vm=None, lg=None):
        parts = []
        if vm is not None and len(self.vm) > vm:
            assert vm <= 63
            parts.append(f'vmcnt({vm})'); self.vm = self.vm[len(self.vm) - vm:] if vm else []
        if lg is not None and len(self.lg) > lg:
            assert lg <= 15
            parts.append(f'lgkmcnt({lg})'); self.lg = self.lg[len(self.lg) - lg:] if lg else []
        if parts: self._emit('s_waitcnt ' + ' '.join(parts))
    def wait_hard(self, vm=None, lg=None):
        parts = []
        if vm is not None:
            parts.append(f'vmcnt({vm})'); self.vm = self.vm[len(self.vm) - vm:] if (vm and len(self.vm) > vm) else ([] if vm == 0 else self.vm)
        if lg is not None:
            parts.append(f'lgkmcnt({lg})'); self.lg = self.lg[len(self.lg) - lg:] if (lg and len(self.lg) > lg) else ([] if lg == 0 else self.lg)
        self._emit('s_waitcnt ' + ' '.join(parts))
    def wait_vm_id(self, id_):
        idx = [i for i, (k, _) in enumerate(self.vm) if k == id_]
        if idx:
            n = len(self.vm) - 1 - idx[0]
            self.wait(vm=min(n, 63))
    def _need(self, ins):
        need = 0
        def dist(p): return self.pos - p
        touched_r = set(ins.src); touched_w = set(ins.dst)
        for r in touched_r | touched_w:
            lw = self.lastw.get(r)
            if lw:
                k, p, op = lw
                d = self.pos - p - 1
                req = 0
                isr = r in touched_r
                if k == 'mfma':
                    passes = 8 if '32x32' in op else 4
                    full = 12 if passes == 8 else 8
                    if ins.kind == 'mfma':
                        if r in ins.srcC and isr and self.lastw_full.get(r) == tuple(ins.srcC) and r not in (set(ins.src) - set(ins.srcC)) | set():
                            a_b = [x for x in ins.src if x not in ins.srcC]
                            req = 0 if r not in a_b else full
                        elif r in ins.srcC: req = full - 2
                        elif isr: req = full
                        else: req = full
                    elif ins.kind in ('valu', 'trans', 'dpp', 'perm', 'rdlane', 'dot', 'vmem', 'ds'):
                        req = full
                elif k in ('valu', 'trans', 'dpp', 'perm', 'rdlane', 'dot'):
                    isv = r[0] == 'v' and r[1:].isdigit()
                    if isv and isr:
                        if ins.kind == 'mfma': req = max(req, 2)
                        if ins.kind == 'dpp': req = max(req, 2)
                        if ins.kind == 'perm': req = max(req, 2)
                        if ins.kind == 'rdlane': req = max(req, 1)
                        if k == 'trans' and ins.kind in ('valu', 'dpp', 'perm', 'rdlane', 'dot', 'mfma', 'vmem', 'ds'): req = max(req, 1)
                    if k == 'dot' and isv:
                        if ins.kind == 'dot' and ins.op == op and r in ins.srcC and r not in [x for x in ins.src if x not in ins.srcC]:
                            pass
                        else: req = max(req, 3)
                    if not isv and isr:
                        if ins.kind == 'vmem': req = max(req, 5)
                        if ins.kind in ('valu', 'trans', 'dpp', 'dot', 'perm', 'mfma'): req = max(req, 2)
                        if ins.kind == 'rdlane': req = max(req, 4)
                        if ins.kind == 'salu': req = max(req, 1)
                elif k == 'salu':
                    if r == 'm0' and isr and ins.kind in ('vmem', 'ds'): req = max(req, 1)
                need = max(need, req - d)
            if r in touched_w:
                p = self.mfma_c.get(r)
                if p is not None and ins.kind in ('valu', 'trans', 'dpp', 'perm', 'dot'):
                    need = max(need, 7 - (self.pos - p - 1))
                p = self.store_data.get(r)
                if p is not None:
                    need = max(need, 2 - (self.pos - p - 1))
        return need
    lastw_full = {}
    def I(self, text, tag=None):
        ins = Ins(text)
        touched = set(ins.src) | set(ins.dst)
        vmn = None; lgn = None
        for i, (k, d) in enumerate(self.vm):
            if d and touched & set(d):
                n = len(self.vm) - 1 - i
                vmn = n if vmn is None else min(vmn, n)
        for i, (k, d) in enumerate(self.lg):
            if d and touched & set(d):
                n = len(self.lg) - 1 - i
                lgn = n if lgn is None else min(lgn, n)
        if vmn is not None: vmn = min(vmn, 63)
        if lgn is not None: lgn = min(lgn, 15)
        if vmn is not None or lgn is not None: self.wait(vm=vmn, lg=lgn)
        n = self._need(ins)
        if n > 0: self.nop(n)
        p = self.pos
        nws = 1
        if ins.op == 's_nop': nws = int(text.split()[1]) + 1
        self._emit(text, nws)
        for r in ins.dst:
            if ins.kind in ('vmem', 'ds', 'smem'):
                self.lastw.pop(r, None)
            else:
                self.lastw[r] = (ins.kind, p, ins.op)
                if ins.kind == 'mfma': self.lastw_full[r] = tuple(ins.dst)
        if ins.kind == 'mfma':
            for r in ins.srcC: self.mfma_c[r] = p
        self.nid += 1
        if ins.kind == 'vmem':
            self.vm.append((self.nid, ins.dst))
            assert len(self.vm) <= 63, 'too many vmem outstanding'
            if ('store' in ins.op or 'atomic' in ins.op) and ('x4' in ins.op or 'x3' in ins.op):
                for r in ins.src:
                    if r[0] == 'v': self.store_data[r] = p
        if ins.kind == 'ds':
            self.lg.append((self.nid, ins.dst))
            if len(self.lg) > 15:
                pass
        return self.nid
    def fence(self):
        need = 0
        for r, (k, p, op) in self.lastw.items():
            d = self.pos - p - 1
            if k == 'mfma': req = 12 if '32x32' in op else 8
            elif k in ('valu', 'trans', 'dpp', 'perm', 'rdlane', 'dot'):
                isv = r[0] == 'v' and r[1:].isdigit()
                req = (3 if k == 'dot' else 2) if isv else 5
            elif r == 'm0': req = 1
            else: req = 0
            need = max(need, req - d)
        for r, p in self.mfma_c.items(): need = max(need, 7 - (self.pos - p - 1))
        for r, p in self.store_data.items(): need = max(need, 2 - (self.pos - p - 1))
        if need > 0: self.nop(need)
    def label(self, name):
        self.fence()
        self.lines.append(name + ':')
    def branch(self, text):
        self.fence()
        self._emit(text)
    def xbranch(self, text):
        self._emit(text)
    def xlabel(self, name):
        self.lines.append(name + ':')
    def snapshot(self):
        return (list(self.vm), list(self.lg))
    def restore(self, snap):
        self.vm, self.lg = list(snap[0]), list(snap[1])
    def text(self):
        return '\n'.join(self.lines) + '\n'
```

```python
S, D, H, F = 2048, 512, 32, 1376
KB = 1024
W1F = 0x000000
W2F = 0x180000
W3F = 0x200000
W4F = 0x4B0000
EXT1 = 0x610000
EXT3 = 0x614000
APHI = 0x620000
TSB = 0x700000
LB0 = 0x1000000
LBS = 0x1000000
XIN = 0x000000
STIN = 0x200000
KVP = 0x280000
KVS = 640
OF = 0x400000
X1F = 0x600000
ST1 = 0x800000
HF = 0x900000
FLG = 0xF00000
FL = 128
F_XC = FLG
F_AR = FLG + 16 * FL
F_OC = FLG + 48 * FL
F_X1 = FLG + 64 * FL
F_HC = FLG + 80 * FL
NFLAG = 128
WS_BYTES = 0x10000000
G = 4096
RESV = 38 * G
L_EXT1 = RESV
L_EXT3 = RESV + 1024
L_APHI = RESV + 3072
LDS_BYTES = 163840
L_SCRT = 24 * G
L_KVA = 32 * G
L_EX2 = 33 * G
L_EX4 = 24 * G
L_CNT = RESV + 5120
def w4_slot(g):
    if g < 6: return 32 + g
    if g < 38: return g - 6
    return 32 + (g - 38)
def std(i): return 16 * (i >> 4) + 8 * ((i >> 2) & 1) + 4 * ((i >> 3) & 1) + (i & 3)
def hs(i): return 16 * ((i >> 2) & 1) + 4 * (i >> 3) + (i & 3)
def kmap_x(ks, half, e): return 32 * (ks >> 1) + 16 * half + 8 * (ks & 1) + e
def kmap_n(ks, half, e): return 16 * ks + 8 * half + e
def units_of(j):
    return [3 * j, 3 * j + 1, 3 * j + 2] if j < 11 else [33 + 2 * (j - 11), 34 + 2 * (j - 11)]
def p4_unit(g):
    n, j = divmod(g, 16)
    return units_of(j)[n]
```

```python
import sys, math, os
from asm import Prog
from layout import *

NAME = 'interleave_layers__linear_kernel_hedgehog__geglu_ffn__prompt'
TS = '--ts' in sys.argv
def f32(x):
    import struct
    return '0x%08x' % struct.unpack('<I', struct.pack('<f', x))[0]
def vr(a, n): return f'v[{a}:{a+n-1}]' if n > 1 else f'v{a}'
def sr(a, n): return f's[{a}:{a+n-1}]' if n > 1 else f's{a}'

WS = 's[4:7]'; OUT = 's[8:11]'
sRB, sJ, sW, sLAYER = 12, 13, 14, 16
sRT, sRT2, sCT = 17, 18, 19
(sXIN, sSTIN, sFXC, sKVR, sFAR, sOFW, sFOCW, sFOCR, sOFR, sX1W, sST1W, sFX1W, sFX1R, sX1R, sST1R,
 sHFW, sFHCW, sFHCR, sHFR, sXNW, sSTNW, sFXNW) = range(20, 42)
LAYER_SREGS = list(range(20, 42))
sHALF = 42
sT0, sT1, sT2, sT3, sT4, sT5 = 44, 45, 46, 47, 48, 49
sHEAVY = 50
sONES, sSELLO, sSELHI, sMASKHI = 51, 52, 53, 54
sPOLL, sITER = 55, 56
sU0 = 57
sTSA = 58
sTS = 60
sW1, sW2, sW3, sW4 = 20, 21, 22, 23
sKVW, sFARW = 24, 25
sHOFF = 26
vL0, vL1, vL2, vL8, vSTW, vAR, vKVA, vPH, vEXT, vOWN, vOTH, vEXW, vEXR, vOUT, vP = range(1, 16)
XB, ACC, AF, RES, BEXT, CON, TMP = 16, 144, 208, 232, 240, 244, 248
NAF = 6
NUP = int(os.environ.get('NUP', 14))
WIN = int(os.environ.get('WIN', 63))
SPOLL = int(os.environ.get('SPOLL', 0))
SLEEP = int(os.environ.get('SLEEP', 0))
W2LATE = int(os.environ.get('W2LATE', 0))

class K:
    def __init__(self):
        self.p = Prog(); self.uid = 0; self.nts = 0
    def I(self, t): return self.p.I(t)
    def lab(self, base):
        self.uid += 1; return f'L_{base}_{self.uid}'
    def ts(self, idx):
        if not TS: return
        self.p.wait(lg=0)
        self.I(f's_memrealtime s[{sTSA}:{sTSA+1}]'); self.p.wait_hard(lg=0)
        self.I(f's_mov_b32 s{sTS+idx}, s{sTSA}')
    def ts_flush(self, n):
        if not TS: return
        p = self.p
        self.I(f'v_mov_b32 v{vP}, 0')
        for i in range(n):
            self.I(f'v_writelane_b32 v{vP}, s{sTS+i}, {i}')
        self.I(f's_lshl_b32 s{sT0}, s2, 3'); self.I(f's_add_u32 s{sT0}, s{sT0}, s{sW}')
        self.I(f's_lshl_b32 s{sT0}, s{sT0}, 1'); self.I(f's_add_u32 s{sT0}, s{sT0}, s{sLAYER}')
        self.I(f's_lshl_b32 s{sT0}, s{sT0}, 8'); self.I(f's_add_u32 s{sT0}, s{sT0}, {TSB}')
        self.I(f'v_lshrrev_b32 v0, 2, v{vL0}')
        self.I(f'buffer_store_dword v{vP}, v0, {WS}, s{sT0} offen')
        p.wait(vm=0)
    def barrier(self):
        self.p.wait(lg=0)
        self.I('s_barrier')
    def lds(self, addr):
        return (vL0 + addr // 65536, addr % 65536)
    def rdfrag(self, dst, addr):
        b, o = self.lds(addr)
        self.I(f'ds_read_b128 {vr(dst,4)}, v{b} offset:{o}')
    def poll(self, sflag, n):
        p = self.p
        L = self.lab('poll'); Dn = self.lab('pdone')
        if SPOLL:
            p.wait(lg=0)
            self.I(f's_mov_b32 s{sITER}, 0x8000')
            p.label(L)
            self.I(f's_load_dword s{sPOLL}, s[4:5], s{sflag} glc')
            p.wait_hard(lg=0)
        else:
            p.wait(vm=0)
            self.I(f's_mov_b32 s{sITER}, 0x8000')
            p.label(L)
            self.I(f'buffer_load_dword v{vP}, off, {WS}, s{sflag} sc1')
            p.wait(vm=0)
            self.I(f'v_readfirstlane_b32 s{sPOLL}, v{vP}')
        self.I(f's_cmp_ge_u32 s{sPOLL}, {n}')
        p.branch(f's_cbranch_scc1 {Dn}')
        if SLEEP: self.I(f's_sleep {SLEEP}')
        self.I(f's_sub_u32 s{sITER}, s{sITER}, 1')
        self.I(f's_cmp_lg_u32 s{sITER}, 0')
        p.branch(f's_cbranch_scc1 {L}')
        p.label(Dn)
    def signal(self, sflag):
        p = self.p
        self.I(f'v_mov_b32 v{vP}, 1')
        p.wait(vm=0)
        self.I('s_mov_b64 exec, 1')
        self.I(f'buffer_atomic_add v{vP}, off, {WS}, s{sflag} sc1')
        self.I('s_mov_b64 exec, -1')
    def loadfrags(self, dst, sbase, idxs, first=0):
        cur = None
        for k, (reg, idx) in enumerate(idxs):
            q = idx // 4
            if q != cur:
                cur = q
                if q == 0: s = sbase
                else:
                    s = sT0 + (q & 1)
                    self.I(f's_add_u32 s{s}, s{sbase}, {q*4096}')
            self.I(f'buffer_load_dwordx4 {vr(reg,4)}, v{vL0}, {WS}, s{s} offen offset:{(idx%4)*1024} sc1')
    def later(self, sbase, n):
        at = {}
        for k in range(NUP, n):
            at[2 * (k - NUP) + 2] = (lambda k=k: self.loadfrags(XB, sbase, [(XB + 4 * (k % 32), k)]))
        return at
    def loadstats(self, dst, sbase):
        for i in range(8):
            self.I(f'buffer_load_dwordx2 {vr(dst+2*i,2)}, v{vL8}, {WS}, s{sbase} offen offset:{i*512} sc1')
    def stats_ops(self, st, mode):
        o = []
        for i in range(1, 8):
            o.append(f'v_add_f32 v{st}, v{st}, v{st+2*i}')
            o.append(f'v_add_f32 v{st+1}, v{st+1}, v{st+2*i+1}')
        o.append(f'v_mov_b32 v{st+2}, v{st}')
        o.append(f'v_mov_b32 v{st+3}, v{st+1}')
        o.append(f'v_permlane32_swap_b32 v{st+2}, v{st}')
        o.append(f'v_permlane32_swap_b32 v{st+3}, v{st+1}')
        o.append(f'v_add_f32 v{st}, v{st}, v{st+2}')
        o.append(f'v_add_f32 v{st+1}, v{st+1}, v{st+3}')
        o.append(f'v_mul_f32 v{st}, {f32(-1/512)}, v{st}')
        o.append(f'v_mul_f32 v{st+1}, {f32(1/512)}, v{st+1}')
        o.append(f'v_fma_f32 v{st+1}, -v{st}, v{st}, v{st+1}')
        o.append(f'v_cvt_pk_bf16_f32 v{BEXT}, v{st}, v{st}')
        o.append(f'v_max_f32 v{st+1}, 0, v{st+1}')
        o.append(f'v_add_f32 v{st+1}, {f32(1e-5)}, v{st+1}')
        o.append(f'v_and_b32 v{st+2}, s{sMASKHI}, v{BEXT}')
        o.append(f'v_rsq_f32 v{st+3}, v{st+1}')
        o.append(f'v_sub_f32 v{st+2}, v{st}, v{st+2}')
        o.append(f'v_cvt_pk_bf16_f32 v{BEXT+1}, v{st+2}, v{st+2}')
        o.append(f'v_cndmask_b32 v{BEXT}, v{BEXT}, 0, s[{sHALF}:{sHALF+1}]')
        o.append(f'v_cndmask_b32 v{BEXT+1}, v{BEXT+1}, 0, s[{sHALF}:{sHALF+1}]')
        if mode == 1:
            o.append(f'v_mul_f32 v{CON}, {f32(math.log2(math.e))}, v{st+3}')
            o.append(f'v_mov_b32 v{CON+2}, v{st+3}')
        else:
            c0 = -2 * math.log2(math.e) * math.sqrt(2 / math.pi)
            o.append(f'v_mul_f32 v{CON}, {f32(c0)}, v{st+3}')
            o.append(f'v_mul_f32 v{st+2}, v{st+3}, v{st+3}')
            o.append(f'v_mul_f32 v{st+2}, {f32(0.044715)}, v{st+2}')
            o.append(f'v_mul_f32 v{CON+1}, v{CON}, v{st+2}')
            o.append(f'v_mov_b32 v{CON+2}, v{st+1}')
        return o
    def gemm(self, steps, fill=None, fill_per=4, pre=None, at=None, lead=NAF-1):
        fill = list(fill or [])
        n = len(steps)
        issued = 0
        def issue(i):
            steps[i][1](AF + 4 * (i % NAF))
        hold = {}
        for i in range(n):
            if at and i in at: at[i]()
            while issued < n and issued <= i + lead:
                if at and ('rd', issued) in at: at[('rd', issued)]()
                issue(issued); issued += 1
            acc, _, b, first = steps[i]
            c = '0' if first else vr(acc, 16)
            self.I(f'v_mfma_f32_32x32x16_bf16 {vr(acc,16)}, {vr(AF+4*(i%NAF),4)}, {vr(b,4)}, {c}')
            budget = fill_per
            while fill and budget > 0:
                t = fill.pop(0)
                if callable(t): t(); budget -= 1; continue
                self.I(t)
                budget -= 2 if t.split()[0] in ('v_exp_f32', 'v_rcp_f32', 'v_rsq_f32') else 1
        for t in fill:
            if callable(t): t()
            else: self.I(t)
    def softmax2(self, P0, P1):
        I = self.I
        Ps = (P0, P1); m = (TMP, TMP + 2); s = (TMP + 4, TMP + 6)
        for a in range(2): I(f'v_max3_f32 v{m[a]}, v{Ps[a]}, v{Ps[a]+1}, v{Ps[a]+2}')
        for i in range(3, 15, 2):
            for a in range(2): I(f'v_max3_f32 v{m[a]}, v{m[a]}, v{Ps[a]+i}, v{Ps[a]+i+1}')
        for a in range(2): I(f'v_max_f32 v{m[a]}, v{m[a]}, v{Ps[a]+15}')
        for a in range(2): I(f'v_mul_f32 v{m[a]}, -v{CON}, v{m[a]}'.replace('v_mul_f32', 'v_mul_f32_e64'))
        for i in range(0, 16, 2):
            for a in range(2):
                I(f'v_pk_fma_f32 {vr(Ps[a]+i,2)}, {vr(Ps[a]+i,2)}, {vr(CON,2)}, {vr(m[a],2)} op_sel_hi:[1,0,0]')
        for i in range(16):
            for a in range(2): I(f'v_exp_f32 v{Ps[a]+i}, v{Ps[a]+i}')
        for a in range(2): I(f'v_pk_add_f32 {vr(s[a],2)}, {vr(Ps[a],2)}, {vr(Ps[a]+2,2)}')
        for i in range(4, 16, 2):
            for a in range(2): I(f'v_pk_add_f32 {vr(s[a],2)}, {vr(s[a],2)}, {vr(Ps[a]+i,2)}')
        for a in range(2): I(f'v_add_f32 v{s[a]}, v{s[a]}, v{s[a]+1}')
        for a in range(2): I(f'v_rcp_f32 v{s[a]}, v{s[a]}')
        for i in range(0, 16, 2):
            for a in range(2):
                I(f'v_pk_mul_f32 {vr(Ps[a]+i,2)}, {vr(Ps[a]+i,2)}, {vr(s[a],2)} op_sel_hi:[1,0]')
        for i in range(8):
            for a in range(2): I(f'v_cvt_pk_bf16_f32 v{Ps[a]+i}, v{Ps[a]+2*i}, v{Ps[a]+2*i+1}')
    def feat(self, acc, P0, P1):
        I = self.I
        for i in range(8): I(f'v_cvt_pk_bf16_f32 v{acc+i}, v{acc+2*i}, v{acc+2*i+1}')
        I(f'v_mfma_f32_32x32x16_bf16 {vr(P0,16)}, {vr(AF,4)}, {vr(acc,4)}, 0')
        I(f'v_mfma_f32_32x32x16_bf16 {vr(P1,16)}, {vr(AF+4,4)}, {vr(acc+4,4)}, 0')
    def gelu_ops(self, Gr, Ur, packed):
        o = []
        if not packed:
            for i in range(0, 16, 2):
                t = [TMP + (i % 8), TMP + (i % 8) + 1]
                for a in range(2): o.append(f'v_mul_f32 v{t[a]}, v{Gr+i+a}, v{Gr+i+a}')
                for a in range(2): o.append(f'v_fma_f32 v{t[a]}, v{t[a]}, v{CON+1}, v{CON}')
                for a in range(2): o.append(f'v_mul_f32 v{t[a]}, v{t[a]}, v{Gr+i+a}')
                for a in range(2): o.append(f'v_exp_f32 v{t[a]}, v{t[a]}')
                for a in range(2): o.append(f'v_mul_f32 v{Ur+i+a}, v{Ur+i+a}, v{Gr+i+a}')
                for a in range(2): o.append(f'v_fma_f32 v{t[a]}, v{t[a]}, v{CON+2}, v{CON+2}')
                for a in range(2): o.append(f'v_rcp_f32 v{t[a]}, v{t[a]}')
                o.append(f'v_nop')
                for a in range(2): o.append(f'v_mul_f32 v{Ur+i+a}, v{Ur+i+a}, v{t[a]}')
                o.append(f'v_cvt_pk_bf16_f32 v{Gr+i//2}, v{Ur+i}, v{Ur+i+1}')
        else:
            for i0 in range(0, 16, 8):
                idx = range(i0, i0 + 8, 2)
                T = lambda i: vr(TMP + (i % 8), 2)
                for i in idx: o.append(f'v_pk_mul_f32 {T(i)}, {vr(Gr+i,2)}, {vr(Gr+i,2)}')
                for i in idx: o.append(f'v_pk_fma_f32 {T(i)}, {T(i)}, {vr(CON,2)}, {vr(CON,2)} op_sel:[0,1,0] op_sel_hi:[1,1,0]')
                for i in idx: o.append(f'v_pk_mul_f32 {T(i)}, {T(i)}, {vr(Gr+i,2)}')
                for i in range(8): o.append(f'v_exp_f32 v{TMP+i}, v{TMP+i}')
                for i in idx: o.append(f'v_pk_mul_f32 {vr(Ur+i,2)}, {vr(Ur+i,2)}, {vr(Gr+i,2)}')
                for i in idx: o.append(f'v_pk_fma_f32 {T(i)}, {T(i)}, {vr(CON+2,2)}, {vr(CON+2,2)} op_sel_hi:[1,0,0]')
                for i in range(8): o.append(f'v_rcp_f32 v{TMP+i}, v{TMP+i}')
                for i in idx: o.append(f'v_pk_mul_f32 {vr(Ur+i,2)}, {vr(Ur+i,2)}, {T(i)}')
                for i in idx: o.append(f'v_cvt_pk_bf16_f32 v{Gr+i//2}, v{Ur+i}, v{Ur+i+1}')
        return o

    def res_init(self, acc):
        for i in range(8):
            self.I(f'v_lshlrev_b32 v{acc+2*i}, 16, v{RES+i}')
            self.I(f'v_and_b32 v{acc+2*i+1}, s{sMASKHI}, v{RES+i}')
    def exchange(self, own, oth, tmp, exbase, sb):
        I = self.I
        b = exbase // 65536 * 65536
        for q in range(4):
            I(f'ds_write_b128 v{vEXW}, {vr(oth+4*q,4)} offset:{exbase-b+q*1024}')
        self.barrier()
        for q in range(4):
            I(f'ds_read_b128 {vr(tmp+4*q,4)}, v{vEXR} offset:{exbase-b+q*1024}')
        for i in range(0, 16, 2):
            I(f'v_pk_add_f32 {vr(own+i,2)}, {vr(own+i,2)}, {vr(tmp+i,2)}')
        for i in range(8):
            I(f'v_cvt_pk_bf16_f32 v{RES+i}, v{own+2*i}, v{own+2*i+1}')
    def xstore(self, sfr, sst):
        I = self.I
        I(f'buffer_store_dwordx4 {vr(RES,4)}, v{vL0}, {WS}, s{sfr} offen sc1')
        I(f'buffer_store_dwordx4 {vr(RES+4,4)}, v{vL0}, {WS}, s{sfr} offen offset:1024 sc1')
        a, b = TMP, TMP + 1
        I(f'v_mov_b32 v{a}, 0'); I(f'v_mov_b32 v{b}, 0')
        for i in range(8):
            I(f'v_dot2c_f32_bf16 v{a}, s{sONES}, v{RES+i}')
            I(f'v_dot2c_f32_bf16 v{b}, v{RES+i}, v{RES+i}')
        I(f'v_mov_b32 v{a+2}, v{a}'); I(f'v_mov_b32 v{b+2}, v{b}')
        I(f'v_permlane32_swap_b32 v{a+2}, v{a}'); I(f'v_permlane32_swap_b32 v{b+2}, v{b}')
        I(f'v_pk_add_f32 {vr(a,2)}, {vr(a,2)}, {vr(a+2,2)}')
        I(f'buffer_store_dwordx2 {vr(a,2)}, v{vSTW}, {WS}, s{sst} offen sc1')

    def main(self):
        p = self.p; I = self.I
        KN = NAME + '_kernel'
        p.raw(f'.globl {KN}\n.p2align 8\n.type {KN},@function\n{KN}:')
        I('s_cmp_ge_u32 s2, 256'); p.branch('s_cbranch_scc1 L_end')
        I('s_load_dwordx2 s[8:9], s[0:1], 64')
        I('s_load_dwordx2 s[4:5], s[0:1], 80')
        I(f'v_readfirstlane_b32 s{sW}, v0')
        I('v_and_b32 v0, 63, v0')
        I(f's_mov_b32 s6, {WS_BYTES:#x}'); I('s_mov_b32 s7, 0x20000')
        I(f's_mov_b32 s10, {S*D*2:#x}'); I('s_mov_b32 s11, 0x20000')
        I(f's_lshr_b32 s{sW}, s{sW}, 6')
        I(f's_and_b32 s{sT0}, s2, 7'); I(f's_lshr_b32 s{sT1}, s2, 3')
        I(f's_lshr_b32 s{sJ}, s{sT1}, 1'); I(f's_and_b32 s{sT1}, s{sT1}, 1')
        I(f's_lshl_b32 s{sRB}, s{sT0}, 1'); I(f's_add_u32 s{sRB}, s{sRB}, s{sT1}')
        I(f's_mov_b32 s{sLAYER}, 0')
        I(f'v_lshlrev_b32 v{vL0}, 4, v0')
        I(f'v_add_u32 v{vL1}, 0x10000, v{vL0}'); I(f'v_add_u32 v{vL2}, 0x20000, v{vL0}')
        I(f's_mul_i32 s{sU0}, s{sJ}, 3'); I(f's_lshl_b32 s{sT0}, s{sJ}, 1'); I(f's_add_u32 s{sT0}, s{sT0}, 11')
        I(f's_cmp_lt_u32 s{sJ}, 11'); I(f's_cselect_b32 s{sU0}, s{sU0}, s{sT0}'); I(f's_cselect_b32 s{sHEAVY}, 1, 0')
        p.wait_hard(lg=0)
        I(f's_cmp_ge_u32 s{sW}, 4'); p.branch('s_cbranch_scc1 L_helper')
        self.compute()
        p.label('L_helper')
        self.helper()
        p.label('L_end')
        I('s_endpgm')

    def compute(self):
        p = self.p; I = self.I
        I(f's_lshl_b32 s{sRT}, s{sRB}, 2');
        I(f's_lshr_b32 s{sT0}, s{sJ}, 3'); I(f's_lshl_b32 s{sT0}, s{sT0}, 1')
        I(f's_and_b32 s{sT1}, s{sW}, 1'); I(f's_add_u32 s{sRT2}, s{sRT}, s{sT0}'); I(f's_add_u32 s{sRT2}, s{sRT2}, s{sT1}')
        I(f's_add_u32 s{sRT}, s{sRT}, s{sW}')
        I(f's_lshr_b32 s{sT2}, s{sW}, 1')
        I(f's_and_b32 s{sT3}, s{sJ}, 7'); I(f's_lshl_b32 s{sCT}, s{sT3}, 1'); I(f's_add_u32 s{sCT}, s{sCT}, s{sT2}')
        def lin(dst, base, terms):
            first = True
            for sreg, mul in terms:
                tgt = dst if first else sT5
                I(f's_mul_i32 s{tgt}, s{sreg}, {mul}')
                if not first: I(f's_add_u32 s{dst}, s{dst}, s{sT5}')
                first = False
            I(f's_add_u32 s{dst}, s{dst}, {base:#x}')
        B = LB0
        lin(sXIN, B + XIN, [(sRT, 32768)]); lin(sSTIN, B + STIN, [(sRT, 4096)]); lin(sFXC, B + F_XC, [(sRT, FL)])
        lin(sKVR, B + KVP, [(sJ, 4 * 16 * KVS), (sW, 16 * KVS)])
        lin(sFAR, B + F_AR, [(sJ, 2 * FL), (sT2, FL)])
        lin(sOFW, B + OF, [(sRT, 32768), (sJ, 2048)])
        I(f's_lshr_b32 s{sT4}, s{sJ}, 3')
        lin(sFOCW, B + F_OC, [(sRT, 2 * FL), (sT4, FL)])
        lin(sFOCR, B + F_OC, [(sRT2, 2 * FL), (sT2, FL)])
        lin(sOFR, B + OF, [(sRT2, 32768), (sT2, 16384)])
        lin(sX1W, B + X1F, [(sRT2, 32768), (sCT, 2048)])
        lin(sST1W, B + ST1, [(sRT2, 4096), (sCT, 256)])
        lin(sFX1W, B + F_X1, [(sRT2, FL)]); lin(sFX1R, B + F_X1, [(sRT, FL)])
        lin(sX1R, B + X1F, [(sRT, 32768)]); lin(sST1R, B + ST1, [(sRT, 4096)])
        lin(sHFW, B + HF, [(sRT, 86 * 1024), (sU0, 2048)])
        lin(sFHCW, B + F_HC, [(sRT, FL)]); lin(sFHCR, B + F_HC, [(sRT2, FL)])
        lin(sHFR, B + HF, [(sRT2, 86 * 1024), (sT2, 43 * 1024)])
        lin(sXNW, B + LBS + XIN, [(sRT2, 32768), (sCT, 2048)])
        lin(sSTNW, B + LBS + STIN, [(sRT2, 4096), (sCT, 256)])
        lin(sFXNW, B + LBS + F_XC, [(sRT2, FL)])
        I(f's_sub_u32 s{sT0}, s{sXNW}, {LBS:#x}')
        I(f'buffer_load_dwordx4 {vr(RES,4)}, v{vL0}, {WS}, s{sT0} offen')
        I(f'buffer_load_dwordx4 {vr(RES+4,4)}, v{vL0}, {WS}, s{sT0} offen offset:1024')
        I(f's_mov_b32 s{sHALF}, 0'); I(f's_mov_b32 s{sHALF+1}, -1')
        I(f's_mov_b32 s{sONES}, 0x3f803f80'); I(f's_mov_b32 s{sSELLO}, 0x3f80'); I(f's_mov_b32 s{sSELHI}, 0x3f800000')
        I(f's_mov_b32 s{sMASKHI}, 0xffff0000')
        t0, t1, t2 = TMP, TMP + 1, TMP + 2
        I(f'v_lshlrev_b32 v{vL8}, 3, v0')
        I(f'v_mov_b32 v{t0}, 0x80000000')
        I(f'v_cndmask_b32 v{vSTW}, v{vL8}, v{t0}, s[{sHALF}:{sHALF+1}]')
        I(f'v_and_b32 v{t1}, 31, v0')
        I(f'v_lshrrev_b32 v{t2}, 5, v0')
        I(f'v_mul_u32_u24 v{vAR}, 320, v{t2}')
        I(f'v_lshl_add_u32 v{vAR}, v{t1}, 4, v{vAR}')
        I(f'v_cmp_gt_u32 vcc, 20, v{t1}')
        I(f'v_cndmask_b32 v{vAR}, v{t0}, v{vAR}, vcc')
        I(f'v_min_u32 v{vKVA}, 16, v{t1}')
        I(f'v_lshl_add_u32 v{vKVA}, v{t2}, 5, v{vKVA}')
        I(f'v_lshlrev_b32 v{vKVA}, 4, v{vKVA}')
        I(f'v_add_u32 v{vKVA}, {L_KVA}, v{vKVA}')
        I(f'v_lshrrev_b32 v{vPH}, 1, v{t1}'); I(f'v_and_b32 v{vPH}, 3, v{vPH}')
        I(f'v_lshlrev_b32 v{t0}, 1, v{t2}'); I(f'v_xor_b32 v{vPH}, v{vPH}, v{t0}')
        I(f'v_lshlrev_b32 v{vPH}, 4, v{vPH}')
        I(f'v_lshl_add_u32 v{vPH}, v{t1}, 6, v{vPH}')
        I(f's_lshl_b32 s{sT0}, s{sW}, 11'); I(f's_add_u32 s{sT0}, s{sT0}, {L_SCRT}')
        I(f'v_add_u32 v{vPH}, s{sT0}, v{vPH}')
        I(f'v_lshlrev_b32 v{vEXT}, 3, v{t1}'); I(f'v_add_u32 v{vEXT}, {RESV}, v{vEXT}')
        I(f'v_lshlrev_b32 v{vOUT}, 10, v{t1}'); I(f'v_lshl_add_u32 v{vOUT}, v{t2}, 5, v{vOUT}')
        I(f's_lshl_b32 s{sT0}, s{sRT2}, 15'); I(f's_lshl_b32 s{sT1}, s{sCT}, 6'); I(f's_add_u32 s{sT0}, s{sT0}, s{sT1}')
        I(f'v_add_u32 v{vOUT}, s{sT0}, v{vOUT}')
        I(f'v_mov_b32 v{BEXT+2}, 0'); I(f'v_mov_b32 v{BEXT+3}, 0')
        p.wait(vm=0)
        p.label('L_layer')
        self.ts(0)
        self.poll(sFXC, 16)
        self.ts(1)
        ST = ACC + 48
        self.loadstats(ST, sSTIN)
        self.loadfrags(XB, sXIN, [(XB + 4 * k, k) for k in range(NUP)])
        self.barrier()
        aK, aV = ACC, ACC + 16
        steps = []
        for ks in range(32):
            steps.append((aK, (lambda d, a=ks * 2048: self.rdfrag(d, a)), XB + 4 * ks, ks == 0))
            steps.append((aV, (lambda d, a=ks * 2048 + 1024: self.rdfrag(d, a)), XB + 4 * ks, ks == 0))
        steps.append((aK, (lambda d: I(f'ds_read_b64 {vr(d,2)}, v{vEXT} offset:0')), BEXT, False))
        steps.append((aV, (lambda d: I(f'ds_read_b64 {vr(d,2)}, v{vEXT} offset:256')), BEXT, False))
        self.gemm(steps, fill=self.stats_ops(ST, 1), fill_per=2, at=self.later(sXIN, 32))
        self.ts(2)
        self.rdfrag(AF, L_APHI); self.rdfrag(AF + 4, L_APHI + 1024)
        P0, P1 = ACC + 32, ACC + 48
        self.feat(aK, P0, P1)
        for i in range(0, 16, 2):
            I(f'v_pk_mul_f32 {vr(aV+i,2)}, {vr(aV+i,2)}, {vr(CON+2,2)} op_sel_hi:[1,0]')
        for i in range(8): I(f'v_cvt_pk_bf16_f32 v{aV+i}, v{aV+2*i}, v{aV+2*i+1}')
        for i in range(4): I(f'v_mov_b32 v{aV+8+i}, s{sONES}')
        I(f'v_cndmask_b32 v{TMP}, 0, 48, s[{sHALF}:{sHALF+1}]')
        I(f'v_xor_b32 v{TMP}, v{TMP}, v{vPH}')
        I(f'v_xor_b32 v{TMP+1}, 32, v{TMP}')
        I(f'ds_write_b128 v{TMP}, {vr(aV,4)} offset:16384')
        I(f'ds_write_b128 v{TMP}, {vr(aV+4,4)} offset:24576')
        I(f'ds_write_b128 v{TMP+1}, {vr(aV+8,4)} offset:16384')
        I(f'ds_write_b128 v{TMP+1}, {vr(aV+8,4)} offset:24576')
        p.wait(lg=0)
        self.softmax2(P0, P1)
        I(f'v_xor_b32 v{TMP}, 16, v{vPH}')
        I(f'ds_write_b128 v{vPH}, {vr(P0,4)}'); I(f'ds_write_b128 v{TMP}, {vr(P0+4,4)}')
        I(f'ds_write_b128 v{vPH}, {vr(P1,4)} offset:8192'); I(f'ds_write_b128 v{TMP}, {vr(P1+4,4)} offset:8192')
        self.barrier()
        self.ts(3)
        aQ = ACC
        steps = [(aQ, (lambda d, a=16 * G + ks * 1024: self.rdfrag(d, a)), XB + 4 * ks, ks == 0) for ks in range(32)]
        steps.append((aQ, (lambda d: I(f'ds_read_b64 {vr(d,2)}, v{vEXT} offset:512')), BEXT, False))
        self.gemm(steps)
        self.rdfrag(AF, L_APHI); self.rdfrag(AF + 4, L_APHI + 1024)
        self.feat(aQ, P0, P1)
        self.softmax2(P0, P1)
        self.ts(4)
        self.poll(sFAR, 16)
        self.ts(5)
        for b in range(16):
            off = b * KVS
            s = sKVR
            if off >= 4096:
                q = off // 4096
                s = sT0 + (q & 1)
                if (b - 1) * KVS // 4096 != q: I(f's_add_u32 s{s}, s{sKVR}, {q*4096}')
                off -= q * 4096
            I(f'buffer_load_dwordx4 {vr(XB+4*b,4)}, v{vAR}, {WS}, s{s} offen offset:{off} sc1')
        R = XB + 64
        for i in range(8): I(f'v_mov_b32 v{R+i}, 0')
        for b in range(16):
            for i in range(4):
                I(f'v_dot2c_f32_bf16 v{R+2*i}, s{sSELLO}, v{XB+4*b+i}')
                I(f'v_dot2c_f32_bf16 v{R+2*i+1}, s{sSELHI}, v{XB+4*b+i}')
        for i in range(4): I(f'v_cvt_pk_bf16_f32 v{R+i}, v{R+2*i}, v{R+2*i+1}')
        I(f's_lshl_b32 s{sT0}, s{sW}, 10')
        I(f'v_add_u32 v{TMP}, s{sT0}, v{vL2}')
        I(f'ds_write_b128 v{TMP}, {vr(R,4)} offset:{L_KVA-131072}')
        self.barrier()
        self.ts(6)
        for q in range(4): I(f'ds_read_b128 {vr(AF+4*q,4)}, v{vKVA} offset:{q*1024}')
        O0, O1 = ACC, ACC + 16
        I(f'v_mfma_f32_32x32x16_bf16 {vr(O0,16)}, {vr(AF,4)}, {vr(P0,4)}, 0')
        I(f'v_mfma_f32_32x32x16_bf16 {vr(O1,16)}, {vr(AF+8,4)}, {vr(P1,4)}, 0')
        I(f'v_mfma_f32_32x32x16_bf16 {vr(O0,16)}, {vr(AF+4,4)}, {vr(P0+4,4)}, {vr(O0,16)}')
        I(f'v_mfma_f32_32x32x16_bf16 {vr(O1,16)}, {vr(AF+12,4)}, {vr(P1+4,4)}, {vr(O1,16)}')
        for O in (O0, O1):
            I(f'v_add_f32 v{O+8}, {f32(1e-6)}, v{O+8}')
            I(f'v_rcp_f32 v{O+8}, v{O+8}')
            for i in range(0, 8, 2): I(f'v_pk_mul_f32 {vr(O+i,2)}, {vr(O+i,2)}, {vr(O+8,2)} op_sel_hi:[1,0]')
            for i in range(4): I(f'v_cvt_pk_bf16_f32 v{O+i}, v{O+2*i}, v{O+2*i+1}')
            I(f'buffer_store_dwordx4 {vr(O,4)}, v{vL0}, {WS}, s{sOFW} offen offset:{0 if O==O0 else 1024} sc1')
        self.signal(sFOCW)
        self.ts(7)
        own, oth = ACC, ACC + 16
        self.res_init(own)
        def setown(base):
            I(f's_lshr_b32 s{sT2}, s{sW}, 1')
            I(f's_mul_i32 s{sT3}, s{sT2}, 3072'); I(f's_add_u32 s{sT3}, s{sT3}, {base}')
            I(f's_lshl_b32 s{sT4}, s{sT2}, 10'); I(f's_add_u32 s{sT4}, s{sT4}, {base+1024}')
            I(f'v_add_u32 v{vOWN}, s{sT3}, v{vL0}'); I(f'v_add_u32 v{vOTH}, s{sT4}, v{vL0}')
        def setex(exbase):
            b = exbase // 65536 * 65536
            I(f's_lshl_b32 s{sT3}, s{sW}, 12'); I(f's_add_u32 s{sT3}, s{sT3}, {b}')
            I(f's_xor_b32 s{sT4}, s{sT3}, 8192')
            I(f'v_add_u32 v{vEXW}, s{sT3}, v{vL0}'); I(f'v_add_u32 v{vEXR}, s{sT4}, v{vL0}')
        setown(0); setex(L_EX2)
        self.poll(sFOCR, 8)
        self.ts(8)
        self.loadfrags(XB, sOFR, [(XB + 4 * k, k) for k in range(min(NUP, 16))])
        steps = []
        for g in range(16):
            steps.append((own, (lambda d, o=g * G: I(f'ds_read_b128 {vr(d,4)}, v{vOWN} offset:{o}')), XB + 4 * g, False))
            steps.append((oth, (lambda d, o=g * G: I(f'ds_read_b128 {vr(d,4)}, v{vOTH} offset:{o}')), XB + 4 * g, g == 0))
        self.gemm(steps, at=self.later(sOFR, 16))
        self.ts(9)
        self.exchange(own, oth, ACC + 32, L_EX2, None)
        self.xstore(sX1W, sST1W)
        self.signal(sFX1W)
        self.ts(10)
        self.poll(sFX1R, 16)
        self.ts(11)
        self.loadstats(ST, sST1R)
        self.loadfrags(XB, sX1R, [(XB + 4 * k, k) for k in range(NUP)])
        def unit(u, region, fill, fill_per, last_barrier=True):
            aG, aU = ACC + 32 * (u & 1), ACC + 32 * (u & 1) + 16
            steps = []
            for ks in range(32):
                steps.append((aG, (lambda d, a=region + ks * 2048: self.rdfrag(d, a)), XB + 4 * ks, ks == 0))
                steps.append((aU, (lambda d, a=region + ks * 2048 + 1024: self.rdfrag(d, a)), XB + 4 * ks, ks == 0))
            steps.append((aG, (lambda d: I(f'ds_read_b64 {vr(d,2)}, v{vEXT} offset:{1024+u*512}')), BEXT, False))
            steps.append((aU, (lambda d: I(f'ds_read_b64 {vr(d,2)}, v{vEXT} offset:{1024+u*512+256}')), BEXT, False))
            at = self.later(sX1R, 32) if u == 0 else {}
            at[64] = self.barrier
            self.gemm(steps, fill=fill, fill_per=fill_per, at=at)
        def hstore(u):
            Gr = ACC + 32 * (u & 1)
            s = sHFW
            if u == 2:
                s = sT0
            o = (u % 2) * 2048
            return ([f's_add_u32 s{sT0}, s{sHFW}, 4096'] if u == 2 else []) + [
                f'buffer_store_dwordx4 {vr(Gr,4)}, v{vL0}, {WS}, s{s} offen offset:{o} sc1',
                f'buffer_store_dwordx4 {vr(Gr+4,4)}, v{vL0}, {WS}, s{s} offen offset:{o+1024} sc1']
        def gel(u, packed):
            return self.gelu_ops(ACC + 32 * (u & 1), ACC + 32 * (u & 1) + 16, packed) + hstore(u)
        unit(0, 16 * G, self.stats_ops(ST, 3), 2)
        self.ts(12)
        unit(1, 0, gel(0, False), 3)
        self.ts(13)
        I(f's_cmp_eq_u32 s{sHEAVY}, 0'); p.branch('s_cbranch_scc1 L_light')
        snap = p.snapshot()
        unit(2, 16 * G, gel(1, False), 3)
        for t in gel(2, True): I(t)
        p.wait(vm=0)
        p.branch('s_branch L_p3done')
        p.label('L_light')
        p.restore(snap)
        self.barrier()
        for t in gel(1, True): I(t)
        p.wait(vm=0)
        p.label('L_p3done')
        self.signal(sFHCW)
        self.ts(14)
        self.res_init(own)
        setex(L_EX4)
        self.poll(sFHCR, 16)
        self.ts(15)
        self.loadfrags(XB, sHFR, [(XB + 4 * k, k) for k in range(NUP)])
        self.barrier()
        steps = []; at = self.later(sHFR, 43)
        cur = None
        for g in range(43):
            a = w4_slot(g) * G
            base = a // 65536 * 65536
            if base != cur:
                cur = base
                at[('rd', 2 * g)] = (lambda b=base: setown(b))
            steps.append((own, (lambda d, o=a - base: I(f'ds_read_b128 {vr(d,4)}, v{vOWN} offset:{o}')), XB + 4 * (g % 32), False))
            steps.append((oth, (lambda d, o=a - base: I(f'ds_read_b128 {vr(d,4)}, v{vOTH} offset:{o}')), XB + 4 * (g % 32), g == 0))
        f20 = at[20]
        at[20] = lambda: (f20(), I('s_barrier'))
        f76 = at[('rd', 76)]
        at[('rd', 76)] = lambda: (I('s_barrier'), f76())
        self.gemm(steps, at=at)
        self.ts(16)
        self.exchange(own, oth, ACC + 32, L_EX4, None)
        I(f's_cmp_eq_u32 s{sLAYER}, 1'); p.branch('s_cbranch_scc1 L_final')
        self.xstore(sXNW, sSTNW)
        self.signal(sFXNW)
        self.ts(17)
        self.ts_flush(18)
        for s in LAYER_SREGS: I(f's_add_u32 s{s}, s{s}, {LBS:#x}')
        I(f's_add_u32 s{sLAYER}, s{sLAYER}, 1')
        p.wait(vm=0)
        p.branch('s_branch L_layer')
        p.label('L_final')
        I(f'buffer_store_dwordx4 {vr(RES,4)}, v{vOUT}, {OUT}, 0 offen')
        I(f'buffer_store_dwordx4 {vr(RES+4,4)}, v{vOUT}, {OUT}, 0 offen offset:16')
        p.wait(vm=0)
        self.ts(17)
        self.ts_flush(18)
        I('s_endpgm')

    def dma(self, sbase, srcg, dstg, lanes=None):
        I = self.I
        I(f's_add_u32 s{sT0}, s{sbase}, {srcg*G & 0xffffffff:#x}')
        I(f's_add_u32 m0, s{sHOFF}, {dstg*G & 0xffffffff:#x}')
        for q in range(4):
            self.p.wait(vm=WIN - 1)
            I(f'buffer_load_dwordx4 v{vL0}, {WS}, s{sT0} offen offset:{q*1024} lds')
    def dma_range(self, sbase, src0, dst0, n, nw=4):
        assert n % nw == 0
        for k in range(0, n, nw): self.dma(sbase, src0 + k, dst0 + k)

    def helper(self):
        p = self.p; I = self.I
        p.vm = []; p.lg = []
        I(f's_sub_u32 s{sT2}, s{sW}, 4')
        I(f's_lshl_b32 s{sHOFF}, s{sT2}, 12')
        I(f's_mul_i32 s{sW1}, s{sJ}, {96*1024}'); I(f's_add_u32 s{sW1}, s{sW1}, s{sHOFF}')
        if W1F: I(f's_add_u32 s{sW1}, s{sW1}, {W1F:#x}')
        if os.environ.get('FAKEW'): I(f's_mov_b32 s{sW1}, s{sHOFF}')
        self.dma_range(sW1, 0, 0, 24)
        I(f's_and_b32 s{sT3}, s{sJ}, 7')
        I(f's_lshl_b32 s{sW2}, s{sT3}, 16'); I(f's_add_u32 s{sW2}, s{sW2}, s{sHOFF}'); I(f's_add_u32 s{sW2}, s{sW2}, {W2F:#x}')
        I(f's_lshl_b32 s{sW3}, s{sU0}, 16'); I(f's_add_u32 s{sW3}, s{sW3}, s{sHOFF}'); I(f's_add_u32 s{sW3}, s{sW3}, {W3F:#x}')
        I(f's_mul_i32 s{sW4}, s{sT3}, {43*G}'); I(f's_add_u32 s{sW4}, s{sW4}, s{sHOFF}'); I(f's_add_u32 s{sW4}, s{sW4}, {W4F:#x}')
        if os.environ.get('FAKEW'):
            for r, b in ((sW2, W2F), (sW3, W3F), (sW4, W4F)): I(f's_add_u32 s{r}, s{sHOFF}, {b:#x}')
        I(f's_lshl_b32 s{sT0}, s{sJ}, 10'); I(f's_add_u32 s{sT0}, s{sT0}, {EXT1:#x}')
        I(f's_mov_b32 m0, {L_EXT1}')
        I(f'buffer_load_dwordx4 v{vL0}, {WS}, s{sT0} offen lds')
        I(f's_lshl_b32 s{sT0}, s{sU0}, 9'); I(f's_add_u32 s{sT0}, s{sT0}, {EXT3:#x}')
        I(f's_mov_b32 m0, {L_EXT3}')
        I(f'buffer_load_dwordx4 v{vL0}, {WS}, s{sT0} offen lds')
        I(f'buffer_load_dwordx4 v{vL0}, {WS}, s{sT0} offen offset:1024 lds')
        I(f's_lshl_b32 s{sT0}, s{sJ}, 11'); I(f's_add_u32 s{sT0}, s{sT0}, {APHI:#x}')
        I(f's_mov_b32 m0, {L_APHI}')
        I(f'buffer_load_dwordx4 v{vL0}, {WS}, s{sT0} offen lds')
        I(f'buffer_load_dwordx4 v{vL0}, {WS}, s{sT0} offen offset:1024 lds')
        I(f's_lshl_b32 s{sT0}, s{sJ}, 1'); I(f's_add_u32 s{sT0}, s{sT0}, s{sT2}')
        I(f's_mul_i32 s{sKVW}, s{sT0}, {32*KVS}'); I(f's_mul_i32 s{sT1}, s{sRB}, {KVS}'); I(f's_add_u32 s{sKVW}, s{sKVW}, s{sT1}')
        I(f's_add_u32 s{sKVW}, s{sKVW}, {LB0+KVP:#x}')
        I(f's_mul_i32 s{sFARW}, s{sT0}, {FL}'); I(f's_add_u32 s{sFARW}, s{sFARW}, {LB0+F_AR:#x}')
        t0, t1, t2, t3 = 20, 21, 22, 23
        vA0, vA1, vB0, vB1 = 24, 25, 26, 27
        I(f'v_mov_b32 v{t0}, 0x80000000')
        I(f'v_and_b32 v{t1}, 31, v0'); I(f'v_lshrrev_b32 v{t2}, 5, v0')
        I(f'v_mul_u32_u24 v{vAR}, 320, v{t2}')
        I(f'v_lshl_add_u32 v{vAR}, v{t1}, 4, v{vAR}')
        I(f'v_cmp_gt_u32 vcc, 20, v{t1}')
        I(f'v_cndmask_b32 v{vAR}, v{t0}, v{vAR}, vcc')
        r_, c_, g_ = 28, 29, 30
        I(f'v_bfe_u32 v{r_}, v0, 2, 2'); I(f'v_and_b32 v{c_}, 3, v0'); I(f'v_bfe_u32 v{g_}, v0, 4, 1')
        I(f'v_lshl_add_u32 v{t0}, v{t2}, 3, v{r_}')
        I(f'v_lshlrev_b32 v{t0}, 6, v{t0}')
        I(f'v_lshrrev_b32 v{t1}, 1, v{c_}'); I(f'v_lshl_add_u32 v{t0}, v{t1}, 3, v{t0}')
        I(f's_lshl_b32 s{sT0}, s{sT2}, 13'); I(f's_add_u32 s{sT0}, s{sT0}, {L_SCRT}')
        I(f'v_add_u32 v{t0}, s{sT0}, v{t0}')
        I(f'v_lshrrev_b32 v{t3}, 1, v{r_}')
        I(f'v_and_b32 v{t1}, 1, v{c_}')
        I(f'v_lshl_add_u32 v{vA0}, v{t1}, 1, v{g_}')
        I(f'v_lshl_add_u32 v{vB0}, v{g_}, 1, v{t1}')
        I(f'v_xor_b32 v{vA0}, v{vA0}, v{t3}'); I(f'v_xor_b32 v{vB0}, v{vB0}, v{t3}')
        I(f'v_lshl_add_u32 v{vA0}, v{vA0}, 4, v{t0}'); I(f'v_lshl_add_u32 v{vB0}, v{vB0}, 4, v{t0}')
        I(f'v_xor_b32 v{vA1}, 32, v{vA0}'); I(f'v_xor_b32 v{vB1}, 32, v{vB0}')
        p.label('L_hlayer')
        self.ts(0)
        p.wait_hard(vm=0); I('s_barrier')
        self.ts(1)
        I('s_barrier')
        self.ts(2)
        I(f's_cmp_ge_u32 s{sW}, 6'); p.branch('s_cbranch_scc1 L_hdma2')
        A = 32; Bq = 64; Dk = 96
        for ks in range(8):
            I(f'ds_read_b64_tr_b16 {vr(A+4*ks,2)}, v{vA0} offset:{ks*1024}')
            I(f'ds_read_b64_tr_b16 {vr(A+4*ks+2,2)}, v{vA1} offset:{ks*1024+256}')
            I(f'ds_read_b64_tr_b16 {vr(Bq+4*ks,2)}, v{vB0} offset:{16384+ks*1024}')
            I(f'ds_read_b64_tr_b16 {vr(Bq+4*ks+2,2)}, v{vB1} offset:{16384+ks*1024+256}')
            if ks >= 2:
                k = ks - 2
                I(f'v_mfma_f32_32x32x16_bf16 {vr(Dk,16)}, {vr(A+4*k,4)}, {vr(Bq+4*k,4)}, {"0" if k==0 else vr(Dk,16)}')
        for k in (6, 7):
            I(f'v_mfma_f32_32x32x16_bf16 {vr(Dk,16)}, {vr(A+4*k,4)}, {vr(Bq+4*k,4)}, {vr(Dk,16)}')
        for i in range(8): I(f'v_cvt_pk_bf16_f32 v{Dk+i}, v{Dk+2*i}, v{Dk+2*i+1}')
        I(f's_add_u32 s{sT0}, s{sKVW}, {16*KVS}')
        I(f'buffer_store_dwordx4 {vr(Dk,4)}, v{vAR}, {WS}, s{sKVW} offen sc1')
        I(f'buffer_store_dwordx4 {vr(Dk+4,4)}, v{vAR}, {WS}, s{sT0} offen sc1')
        self.signal(sFARW)
        if W2LATE:
            for k in range(0, 16, 2): self.dma(sW2, k, k)
        p.branch('s_branch L_hb3')
        p.label('L_hdma2')
        p.vm = []
        if not W2LATE:
            for k in range(0, 16, 2): self.dma(sW2, k - 2, k - 2)
        p.label('L_hb3')
        self.ts(3)
        p.wait_hard(vm=0); I('s_barrier')
        self.ts(4)
        self.dma_range(sW3, 0, 16, 16)
        p.wait(vm=0); I('s_barrier')
        self.ts(5)
        self.dma_range(sW3, 16, 0, 16)
        p.wait(vm=0); I('s_barrier')
        self.ts(6)
        I(f's_cmp_eq_u32 s{sHEAVY}, 0'); p.branch('s_cbranch_scc1 L_hlight')
        self.dma_range(sW3, 32, 16, 16)
        p.label('L_hlight')
        self.dma_range(sW4, 0, 32, 4)
        I(f's_cmp_ge_u32 s{sW}, 6'); p.branch('s_cbranch_scc1 L_h6')
        self.dma(sW4, 4, 36)
        p.label('L_h6')
        p.wait_hard(vm=0); I('s_barrier')
        self.ts(7)
        self.dma_range(sW4, 14, 0, 16)
        I('s_barrier')
        self.ts(8)
        self.dma_range(sW4, 6, 24, 8)
        self.dma_range(sW4, 30, 16, 8)
        p.wait(vm=0); I('s_barrier')
        self.ts(9)
        I('s_barrier')
        self.dma_range(sW4, 38, 32, 4)
        I(f's_cmp_ge_u32 s{sW}, 5'); p.branch('s_cbranch_scc1 L_h7')
        self.dma(sW4, 42, 36)
        p.label('L_h7')
        p.wait_hard(vm=0); I('s_barrier')
        self.ts(10)
        I('s_barrier')
        self.ts(11)
        self.ts_flush(12)
        I(f's_cmp_eq_u32 s{sLAYER}, 1'); p.branch('s_cbranch_scc1 L_end')
        self.dma_range(sW1, 0, 0, 24)
        I(f's_add_u32 s{sKVW}, s{sKVW}, {LBS:#x}'); I(f's_add_u32 s{sFARW}, s{sFARW}, {LBS:#x}')
        I(f's_add_u32 s{sLAYER}, s{sLAYER}, 1')
        p.branch('s_branch L_hlayer')

def desc(name, vg=256):
    return f""".p2align 6
.amdhsa_kernel {name}
  .amdhsa_next_free_vgpr {vg}
  .amdhsa_next_free_sgpr 102
  .amdhsa_accum_offset {vg}
  .amdhsa_group_segment_fixed_size 0
  .amdhsa_kernarg_size 88
  .amdhsa_user_sgpr_count 2
  .amdhsa_user_sgpr_kernarg_segment_ptr 1
  .amdhsa_system_sgpr_workgroup_id_x 1
.end_amdhsa_kernel
"""
if __name__ == '__main__':
    out = [a for a in sys.argv[1:] if not a.startswith('--')][0]
    ref = open(f'cdna_kernels/{NAME}.s.ref').read().split('\n')
    hdr = [l for l in ref if l.startswith(';') and '@launch' not in l]
    k = K(); k.main()
    import prep
    withprep = '--noprep' not in sys.argv
    txt = '\n'.join(hdr) + '\n'
    if withprep:
        txt += f'; @launch kernel=prep_kernel grid=({prep.GRID},1,1) block=(256,1,1) lds={prep.LDS}\n'
    txt += f'; @launch kernel={NAME}_kernel grid=(256,1,1) block=(512,1,1) lds={LDS_BYTES}\n'
    txt += '.amdgcn_target "amdgcn-amd-amdhsa--gfx950"\n.text\n' + k.p.text()
    if withprep: txt += prep.gen()
    txt += '.section .rodata,"a"\n' + desc(NAME + '_kernel')
    if withprep: txt += desc('prep_kernel', 128)
    open(out, 'w').write(txt)
    print(k.p.stats)
```

```python
import re

def regs_of(tok):
    tok = tok.strip()
    tok = re.sub(r'^-', '', tok)
    m = re.match(r'^(abs|neg)\((.*)\)$', tok)
    if m: tok = m.group(2)
    tok = tok.strip('|')
    m = re.match(r'^([vsa])\[(\d+):(\d+)\]$', tok)
    if m:
        return [f"{m.group(1)}{i}" for i in range(int(m.group(2)), int(m.group(3)) + 1)]
    if re.match(r'^[vsa]\d+$', tok): return [tok]
    if tok == 'vcc': return ['vcc_lo', 'vcc_hi']
    if tok == 'exec': return ['exec_lo', 'exec_hi']
    if tok in ('vcc_lo', 'vcc_hi', 'exec_lo', 'exec_hi', 'm0', 'scc'): return [tok]
    return []

TRANS = ('v_exp_f32', 'v_log_f32', 'v_rcp_f32', 'v_rsq_f32', 'v_sqrt_f32', 'v_sin_f32', 'v_cos_f32')

class Ins:
    __slots__ = ('text', 'op', 'dst', 'src', 'kind', 'srcC', 'tag')
    def __init__(self, text, tag=None):
        self.text = text
        self.tag = tag
        body = text.split(';')[0].strip()
        parts = body.split(None, 1)
        self.op = op = parts[0]
        rest = parts[1] if len(parts) > 1 else ''
        ops = [o.strip() for o in rest.split(',')] if rest else []
        joined = []
        depth = 0
        cur = ''
        for ch in rest:
            if ch == '[' or ch == '(': depth += 1
            if ch == ']' or ch == ')': depth -= 1
            if ch == ',' and depth == 0:
                joined.append(cur.strip()); cur = ''
            else:
                cur += ch
        if cur.strip(): joined.append(cur.strip())
        ops = joined
        mods = ''
        if ops:
            last = ops[-1].split()
            ops[-1] = last[0]
            mods = ' '.join(last[1:])
        R = [regs_of(o) for o in ops]
        flat = lambda l: [r for x in l for r in x]
        self.srcC = []
        dst, src = [], []
        if op.startswith('v_mfma'):
            kind = 'mfma'; dst = R[0]; src = flat(R[1:]); self.srcC = R[3]
        elif op.startswith('v_cmp'):
            kind = 'valu'; dst = R[0]; src = flat(R[1:])
            if op.startswith('v_cmpx'): dst = dst + ['exec_lo', 'exec_hi']
        elif op.startswith('v_permlane') and 'swap' in op:
            kind = 'perm'; dst = flat(R); src = flat(R)
        elif op.startswith('v_readfirstlane') or op.startswith('v_readlane'):
            kind = 'rdlane'; dst = R[0]; src = flat(R[1:])
        elif op.startswith('v_dot2c') or op.startswith('v_dot2'):
            kind = 'dot'; dst = R[0]; src = flat(R[1:]) + (R[0] if 'dot2c' in op else [])
            self.srcC = R[0] if 'dot2c' in op else R[3]
        elif op.startswith('v_fmac') or op.startswith('v_pk_fmac'):
            kind = 'valu'; dst = R[0]; src = flat(R)
        elif op.startswith('v_cndmask'):
            kind = 'valu'; dst = R[0]; src = flat(R[1:])
            if len(ops) == 3: src += ['vcc_lo', 'vcc_hi']
        elif op.startswith('v_add_co') or op.startswith('v_sub_co') or op.startswith('v_addc_co'):
            kind = 'valu'; dst = R[0] + R[1]; src = flat(R[2:])
        elif op == 'v_nop':
            kind = 'valu'
        elif op.startswith('v_'):
            kind = 'trans' if op.replace('_e32', '').replace('_e64', '') in TRANS else 'valu'
            dst = R[0]; src = flat(R[1:])
            if 'dpp' in op or 'row_' in mods or 'quad_perm' in mods: kind = 'dpp'; src += dst
        elif op.startswith('ds_read') or op.startswith('ds_bpermute') or op.startswith('ds_swizzle'):
            kind = 'ds'; dst = R[0]; src = flat(R[1:])
        elif op.startswith('ds_add_rtn'):
            kind = 'ds'; dst = R[0]; src = flat(R[1:])
        elif op.startswith('ds_write') or op.startswith('ds_add'):
            kind = 'ds'; src = flat(R)
        elif op.startswith('buffer_load') or op.startswith('global_load'):
            kind = 'vmem'
            if ' lds' in (' ' + mods) or 'load_lds' in op:
                src = flat(R) + ['m0']; kind = 'vmem'
                self.tag = self.tag
            else:
                dst = R[0]; src = flat(R[1:])
        elif op.startswith('buffer_store') or op.startswith('global_store'):
            kind = 'vmem'; src = flat(R)
        elif op.startswith('buffer_atomic') or op.startswith('global_atomic'):
            kind = 'vmem'; src = flat(R)
            if 'sc0' in mods.split(): dst = R[0]
        elif op.startswith('s_load') or op.startswith('s_memtime') or op.startswith('s_memrealtime'):
            kind = 'smem'; dst = R[0]; src = flat(R[1:])
        elif op.startswith('s_cmp') or op.startswith('s_bitcmp'):
            kind = 'salu'; dst = ['scc']; src = flat(R)
        elif op in ('s_waitcnt', 's_nop', 's_barrier', 's_endpgm', 's_sleep', 's_setprio', 's_branch') or op.startswith('s_cbranch'):
            kind = 'ctl'
        elif op.startswith('s_'):
            kind = 'salu'; dst = R[0] + ['scc']; src = flat(R[1:])
            if 'saveexec' in op: dst += ['exec_lo', 'exec_hi']; src += ['exec_lo', 'exec_hi']
            if op.startswith('s_cselect') or op.startswith('s_addc'): src += ['scc']
            if op.startswith('s_mov') or op.startswith('s_cselect') or op.startswith('s_getreg') or op.startswith('s_getpc') or op.startswith('s_mul_i32') or op.startswith('s_mul_hi'):
                dst = R[0]
            if op.startswith('s_addk') or op.startswith('s_mulk'): src += R[0]
        else:
            raise ValueError('unknown op ' + text)
        self.kind = kind; self.dst = dst; self.src = src

class Prog:
    def __init__(self):
        self.lines = []
        self.pos = 0
        self.lastw = {}
        self.mfma_c = {}
        self.store_data = {}
        self.vm = []
        self.lg = []
        self.nid = 0
        self.stats = {'nops': 0, 'ins': 0}
    def raw(self, text):
        self.lines.append(text)
    def comment(self, text):
        self.lines.append('  ; ' + text)
    def _emit(self, text, n=1):
        self.lines.append('  ' + text); self.pos += n; self.stats['ins'] += 1
    def nop(self, n):
        while n > 0:
            k = min(n, 16)
            self._emit(f's_nop {k-1}', k); self.stats['nops'] += k
            n -= k
    def wait(self, vm=None, lg=None):
        parts = []
        if vm is not None and len(self.vm) > vm:
            assert vm <= 63
            parts.append(f'vmcnt({vm})'); self.vm = self.vm[len(self.vm) - vm:] if vm else []
        if lg is not None and len(self.lg) > lg:
            assert lg <= 15
            parts.append(f'lgkmcnt({lg})'); self.lg = self.lg[len(self.lg) - lg:] if lg else []
        if parts: self._emit('s_waitcnt ' + ' '.join(parts))
    def wait_hard(self, vm=None, lg=None):
        parts = []
        if vm is not None:
            parts.append(f'vmcnt({vm})'); self.vm = self.vm[len(self.vm) - vm:] if (vm and len(self.vm) > vm) else ([] if vm == 0 else self.vm)
        if lg is not None:
            parts.append(f'lgkmcnt({lg})'); self.lg = self.lg[len(self.lg) - lg:] if (lg and len(self.lg) > lg) else ([] if lg == 0 else self.lg)
        self._emit('s_waitcnt ' + ' '.join(parts))
    def wait_vm_id(self, id_):
        idx = [i for i, (k, _) in enumerate(self.vm) if k == id_]
        if idx:
            n = len(self.vm) - 1 - idx[0]
            self.wait(vm=min(n, 63))
    def _need(self, ins):
        need = 0
        def dist(p): return self.pos - p
        touched_r = set(ins.src); touched_w = set(ins.dst)
        for r in touched_r | touched_w:
            lw = self.lastw.get(r)
            if lw:
                k, p, op = lw
                d = self.pos - p - 1
                req = 0
                isr = r in touched_r
                if k == 'mfma':
                    passes = 8 if '32x32' in op else 4
                    full = 12 if passes == 8 else 8
                    if ins.kind == 'mfma':
                        if r in ins.srcC and isr and self.lastw_full.get(r) == tuple(ins.srcC) and r not in (set(ins.src) - set(ins.srcC)) | set():
                            a_b = [x for x in ins.src if x not in ins.srcC]
                            req = 0 if r not in a_b else full
                        elif r in ins.srcC: req = full - 2
                        elif isr: req = full
                        else: req = full
                    elif ins.kind in ('valu', 'trans', 'dpp', 'perm', 'rdlane', 'dot', 'vmem', 'ds'):
                        req = full
                elif k in ('valu', 'trans', 'dpp', 'perm', 'rdlane', 'dot'):
                    isv = r[0] == 'v' and r[1:].isdigit()
                    if isv and isr:
                        if ins.kind == 'mfma': req = max(req, 2)
                        if ins.kind == 'dpp': req = max(req, 2)
                        if ins.kind == 'perm': req = max(req, 2)
                        if ins.kind == 'rdlane': req = max(req, 1)
                        if k == 'trans' and ins.kind in ('valu', 'dpp', 'perm', 'rdlane', 'dot', 'mfma', 'vmem', 'ds'): req = max(req, 1)
                    if k == 'dot' and isv:
                        if ins.kind == 'dot' and ins.op == op and r in ins.srcC and r not in [x for x in ins.src if x not in ins.srcC]:
                            pass
                        else: req = max(req, 3)
                    if not isv and isr:
                        if ins.kind == 'vmem': req = max(req, 5)
                        if ins.kind in ('valu', 'trans', 'dpp', 'dot', 'perm', 'mfma'): req = max(req, 2)
                        if ins.kind == 'rdlane': req = max(req, 4)
                        if ins.kind == 'salu': req = max(req, 1)
                elif k == 'salu':
                    if r == 'm0' and isr and ins.kind in ('vmem', 'ds'): req = max(req, 1)
                need = max(need, req - d)
            if r in touched_w:
                p = self.mfma_c.get(r)
                if p is not None and ins.kind in ('valu', 'trans', 'dpp', 'perm', 'dot'):
                    need = max(need, 7 - (self.pos - p - 1))
                p = self.store_data.get(r)
                if p is not None:
                    need = max(need, 2 - (self.pos - p - 1))
        return need
    lastw_full = {}
    def I(self, text, tag=None):
        ins = Ins(text)
        touched = set(ins.src) | set(ins.dst)
        vmn = None; lgn = None
        for i, (k, d) in enumerate(self.vm):
            if d and touched & set(d):
                n = len(self.vm) - 1 - i
                vmn = n if vmn is None else min(vmn, n)
        for i, (k, d) in enumerate(self.lg):
            if d and touched & set(d):
                n = len(self.lg) - 1 - i
                lgn = n if lgn is None else min(lgn, n)
        if vmn is not None: vmn = min(vmn, 63)
        if lgn is not None: lgn = min(lgn, 15)
        if vmn is not None or lgn is not None: self.wait(vm=vmn, lg=lgn)
        n = self._need(ins)
        if n > 0: self.nop(n)
        p = self.pos
        nws = 1
        if ins.op == 's_nop': nws = int(text.split()[1]) + 1
        self._emit(text, nws)
        for r in ins.dst:
            if ins.kind in ('vmem', 'ds', 'smem'):
                self.lastw.pop(r, None)
            else:
                self.lastw[r] = (ins.kind, p, ins.op)
                if ins.kind == 'mfma': self.lastw_full[r] = tuple(ins.dst)
        if ins.kind == 'mfma':
            for r in ins.srcC: self.mfma_c[r] = p
        self.nid += 1
        if ins.kind == 'vmem':
            self.vm.append((self.nid, ins.dst))
            assert len(self.vm) <= 63, 'too many vmem outstanding'
            if ('store' in ins.op or 'atomic' in ins.op) and ('x4' in ins.op or 'x3' in ins.op):
                for r in ins.src:
                    if r[0] == 'v': self.store_data[r] = p
        if ins.kind == 'ds':
            self.lg.append((self.nid, ins.dst))
            if len(self.lg) > 15:
                pass
        return self.nid
    def touch(self, regs):
        touched = set(regs); vmn = None; lgn = None
        for i, (k, d) in enumerate(self.vm):
            if d and touched & set(d):
                n = len(self.vm) - 1 - i
                vmn = n if vmn is None else min(vmn, n)
        for i, (k, d) in enumerate(self.lg):
            if d and touched & set(d):
                n = len(self.lg) - 1 - i
                lgn = n if lgn is None else min(lgn, n)
        if vmn is not None: vmn = min(vmn, 63)
        if lgn is not None: lgn = min(lgn, 15)
        if vmn is not None or lgn is not None: self.wait(vm=vmn, lg=lgn)
    def fence(self):
        need = 0
        for r, (k, p, op) in self.lastw.items():
            d = self.pos - p - 1
            if k == 'mfma': req = 12 if '32x32' in op else 8
            elif k in ('valu', 'trans', 'dpp', 'perm', 'rdlane', 'dot'):
                isv = r[0] == 'v' and r[1:].isdigit()
                req = (3 if k == 'dot' else 2) if isv else 5
            elif r == 'm0': req = 1
            else: req = 0
            need = max(need, req - d)
        for r, p in self.mfma_c.items(): need = max(need, 7 - (self.pos - p - 1))
        for r, p in self.store_data.items(): need = max(need, 2 - (self.pos - p - 1))
        if need > 0: self.nop(need)
    def label(self, name):
        self.fence()
        self.lines.append(name + ':')
    def branch(self, text):
        self.fence()
        self._emit(text)
    def xbranch(self, text):
        self._emit(text)
    def xlabel(self, name):
        self.lines.append(name + ':')
    def snapshot(self):
        return (list(self.vm), list(self.lg))
    def restore(self, snap):
        self.vm, self.lg = list(snap[0]), list(snap[1])
    def text(self):
        return '\n'.join(self.lines) + '\n'
```

```python
S, D, H, F = 2048, 512, 32, 1376
TSB = 0x700000
FLG = 0x780000
LB0 = 0x1000000
LBS = 0x1000000
XIN = 0x000000
STIN = 0x200000
KVP = 0x280000
KVS = 640
OF = 0x400000
X1F = 0x600000
ST1 = 0x800000
HF = 0x900000
FL = 128
K_XC, K_OC, K_X1, K_HC = 0, 1, 2, 3
FLS = 24 * FL
F_AR = 48 * FL
WS_BYTES = 0x10000000
G = 4096
RESV = 38 * G
L_EXT1 = RESV
L_EXT3 = RESV + 1024
L_APHI = RESV + 3072
L_PHIR = RESV + 5120
L_MODE = RESV + 6144
LDS_BYTES = 163840
L_SCRT = 24 * G
L_KVA = 32 * G
L_EX2 = 33 * G
L_EX4 = 24 * G
def w4_slot(g):
    if g < 6: return 32 + g
    if g < 22: return 16 + (g - 6)
    if g < 30: return [0, 1, 2, 3, 8, 9, 10, 11][g - 22]
    if g < 38: return [4, 5, 6, 7, 12, 13, 14, 15][g - 30]
    return 32 + (g - 38)
def std(i): return 16 * (i >> 4) + 8 * ((i >> 2) & 1) + 4 * ((i >> 3) & 1) + (i & 3)
def hs(i): return 16 * ((i >> 2) & 1) + 4 * (i >> 3) + (i & 3)
def kmap_x(ks, half, e): return 32 * (ks >> 1) + 16 * half + 8 * (ks & 1) + e
def kmap_n(ks, half, e): return 16 * ks + 8 * half + e
def p4_unit(g): return g
```

```python
import sys, math, os
from asm import Prog
from layout import *

NAME = 'interleave_layers__linear_kernel_hedgehog__geglu_ffn__prompt'
TS = '--ts' in sys.argv
def f32(x):
    import struct
    return '0x%08x' % struct.unpack('<I', struct.pack('<f', x))[0]
def vr(a, n): return f'v[{a}:{a+n-1}]' if n > 1 else f'v{a}'
def env(n, d): return int(os.environ.get(n, d))

WS = 's[4:7]'; OUT = 's[8:11]'; XS = 's[96:99]'
sRB, sJ, sW, sHEAVY, sLAYER = 12, 13, 14, 15, 16
sRT, sRT2, sCT = 17, 18, 19
(sKVR, sKVW, sOFW, sOFR, sX1W, sST1W, sX1R, sST1R, sHFW, sHFR) = range(20, 30)
LAY_A = list(range(20, 30))
(sFOCW, sFOCR, sFX1W, sFX1R, sFHCW, sFHCR) = range(30, 36)
LAY_F = list(range(30, 36))
sFAR, sFARW = 36, 37
sXNW, sSTNW, sFXW, sFXR = 38, 39, 40, 41
sHALF = 42
sT0, sT1, sT2, sT3, sT4, sT5 = 44, 45, 46, 47, 48, 49
sONES, sSELLO, sSELHI, sMASKHI = 51, 52, 53, 54
sPOLL, sITER = 55, 56
sTSA = 58
sTS = 60
NTS = 18
vHS = 0
vL0, vT0, vT1, vL8, vL2, vAR, vKVA, vPH, vEXT, vOWN, vOTH, vX0, vX1, vFO, vP = range(1, 16)
XB, ACC, AF, RES, BEXT, CON, TMP = 16, 144, 208, 232, 240, 244, 248
vONE = CON + 3
NAF = 6
NUP = env('NUP', 14)
NUP2 = env('NUP2', 16)
SLEEP = env('SLEEP', 1)
FORCESLOW = env('FORCESLOW', 0)
BE = env('BE', 56); BM = env('BM', 44); BU1 = env('BU1', 48); B7B = env('B7B', 38)
FP = env('FP', 3)
PFAT = env('PFAT', 1)
PAIRW = env('PAIRW', 1)
DBGT = env('DBGT', 0)
CPF = env('CPF', 0)
hW1, hWO, hWG, hWU, hWD, hPH = 20, 24, 28, 32, 36, 40
sH, sCC, sA, sB, sM = 44, 45, 46, 47, 48
sDB = 96
sXC = 52
hL0, hL1, hG1, hG3, hG2, hT0, hB, hA0, hA1 = 1, 2, 3, 4, 5, 6, 7, 8, 9
hR = 12
hD = 28
RW1, RW2, RW3 = 32, 128, 192
def sq(a): return f's[{a}:{a+3}]'

class K:
    def __init__(self):
        self.p = Prog(); self.uid = 0; self.ool = []; self.sc = ''; self.x = ''
    def I(self, t): return self.p.I(t)
    def lab(self, base):
        self.uid += 1; return f'L_{base}_{self.uid}'
    def ts(self, idx):
        if not TS: return
        self.p.wait(lg=0)
        self.I(f's_memrealtime s[{sTSA}:{sTSA+1}]'); self.p.wait_hard(lg=0)
        self.I(f's_mov_b32 s{sTS+idx}, s{sTSA}')
    def ts_save(self):
        if not TS: return
        for i in range(NTS): self.I(f's_mov_b32 s{sTS+NTS+i}, s{sTS+i}')
    def ts_flush(self, va, vb, vl):
        if not TS: return
        p = self.p
        self.I(f'v_mov_b32 v{va}, 0')
        for i in range(2 * NTS):
            self.I(f'v_writelane_b32 v{va}, s{sTS+(i+NTS)%(2*NTS)}, {i}')
        self.I(f's_lshl_b32 s{sT0}, s2, 3'); self.I(f's_add_u32 s{sT0}, s{sT0}, s{sW}')
        self.I(f's_lshl_b32 s{sT0}, s{sT0}, 8'); self.I(f's_add_u32 s{sT0}, s{sT0}, {TSB}')
        self.I(f'v_lshrrev_b32 v{vb}, 2, v{vl}')
        self.I(f'buffer_store_dword v{va}, v{vb}, {WS}, s{sT0} offen')
        p.wait(vm=0)
    def barrier(self):
        self.p.wait(lg=0)
        self.I('s_barrier')
    def bar(self): self.I('s_barrier')
    def rdtr(self, dst, base, off):
        self.I(f'ds_read_b64_tr_b16 {vr(dst,2)}, v{base} offset:{off}')
        self.I(f'ds_read_b64_tr_b16 {vr(dst+2,2)}, v{base} offset:{off+256}')
    def rdstrip(self, dst, strip, ks):
        a = strip * G + (32 * (ks >> 1) + 8 * (ks & 1)) * 64
        self.rdtr(dst, vT0 + a // 65536, a % 65536)
    def poll(self, sflag, off=0, vo=vFO):
        p = self.p
        L = self.lab('poll'); Dn = self.lab('pdone')
        self.I(f's_mov_b32 s{sITER}, 0x8000')
        p.label(L)
        self.I(f'buffer_load_dword v{vP}, v{vo}, {WS}, s{sflag} offen offset:{off} sc1')
        self.I(f's_sub_u32 s{sITER}, s{sITER}, 1')
        p.wait(vm=0)
        self.I(f'v_cmp_eq_u32 vcc, 0, v{vP}')
        p.xbranch(f's_cbranch_vccz {Dn}')
        p.xbranch(f's_cbranch_scc0 {L}')
        p.xlabel(Dn)
    def poll_issue(self, sflag, off):
        self.I(f'buffer_load_dword v{vP}, v{vFO}, {WS}, s{sflag} offen offset:{off} sc1')
    def poll_check(self, sflag, off):
        p = self.p
        L = self.lab('slow'); Bk = self.lab('back')
        self.I(f'v_cmp_eq_u32 vcc, 0, v{vP}')
        p.xbranch(f's_cbranch_vccnz {L}')
        p.xlabel(Bk)
        self.ool.append(f"""{L}:
  s_mov_b32 s{sITER}, 0x8000
{L}b:
  buffer_load_dword v{vP}, v{vFO}, {WS}, s{sflag} offen offset:{off} sc1
  s_sub_u32 s{sITER}, s{sITER}, 1
  s_waitcnt vmcnt(0)
  v_cmp_eq_u32 vcc, 0, v{vP}
  s_cbranch_vccz {Bk}
  s_cbranch_scc0 {L}b
  s_branch {Bk}""")
    def signal(self, sflag, offs=(0,), ids=None):
        p = self.p
        if ids is None: p.wait(vm=0)
        else:
            for i in ids: p.wait_vm_id(i)
        self.I('s_mov_b64 exec, 1')
        for o in offs: self.I(f'buffer_store_dword v{vONE}, off, {WS}, s{sflag} offset:{o}{self.sc}')
        self.I('s_mov_b64 exec, -1')
    def loadfrags(self, sbase, idxs):
        cur = None
        for reg, idx in idxs:
            q = idx // 4
            if q != cur:
                cur = q
                if q == 0: s = sbase
                else:
                    s = sT0 + (q & 1)
                    self.I(f's_add_u32 s{s}, s{sbase}, {q*4096}')
            self.I(f'buffer_load_dwordx4 {vr(reg,4)}, v{vL0}, {WS}, s{s} offen offset:{(idx%4)*1024} sc1')
    def later(self, sbase, n, nup, at=None):
        at = {} if at is None else at
        for k in range(nup, n):
            at.setdefault(2 * (k - nup) + 2, []).append(lambda k=k: self.loadfrags(sbase, [(XB + 4 * (k % 32), k)]))
        return at
    def loadstats(self, dst, sbase):
        for i in range(8):
            self.I(f'buffer_load_dwordx2 {vr(dst+2*i,2)}, v{vL8}, {WS}, s{sbase} offen offset:{i*512} sc1')
    def stats_red(self, st):
        o = []
        for i in range(1, 8):
            o.append(f'v_add_f32 v{st}, v{st}, v{st+2*i}')
            o.append(f'v_add_f32 v{st+1}, v{st+1}, v{st+2*i+1}')
        return o
    def stats_fin(self, st, mode):
        o = []
        o.append(f'v_mov_b32 v{st+2}, v{st}')
        o.append(f'v_mov_b32 v{st+3}, v{st+1}')
        o.append(f'v_permlane32_swap_b32 v{st+2}, v{st}')
        o.append(f'v_permlane32_swap_b32 v{st+3}, v{st+1}')
        o.append(f'v_add_f32 v{st}, v{st}, v{st+2}')
        o.append(f'v_add_f32 v{st+1}, v{st+1}, v{st+3}')
        o.append(f'v_mul_f32 v{st}, {f32(-1/512)}, v{st}')
        o.append(f'v_mul_f32 v{st+1}, {f32(1/512)}, v{st+1}')
        o.append(f'v_fma_f32 v{st+1}, -v{st}, v{st}, v{st+1}')
        o.append(f'v_cvt_pk_bf16_f32 v{BEXT}, v{st}, v{st}')
        o.append(f'v_max_f32 v{st+1}, 0, v{st+1}')
        o.append(f'v_add_f32 v{st+1}, {f32(1e-5)}, v{st+1}')
        o.append(f'v_and_b32 v{st+2}, s{sMASKHI}, v{BEXT}')
        o.append(f'v_rsq_f32 v{st+3}, v{st+1}')
        o.append(f'v_sub_f32 v{st+2}, v{st}, v{st+2}')
        o.append(f'v_cvt_pk_bf16_f32 v{BEXT+1}, v{st+2}, v{st+2}')
        o.append(f'v_cndmask_b32 v{BEXT}, v{BEXT}, 0, s[{sHALF}:{sHALF+1}]')
        o.append(f'v_cndmask_b32 v{BEXT+1}, v{BEXT+1}, 0, s[{sHALF}:{sHALF+1}]')
        if mode == 1:
            o.append(f'v_mul_f32 v{CON}, {f32(math.log2(math.e))}, v{st+3}')
            o.append(f'v_mov_b32 v{CON+2}, v{st+3}')
        else:
            c0 = -2 * math.log2(math.e) * math.sqrt(2 / math.pi)
            o.append(f'v_mul_f32 v{CON}, {f32(c0)}, v{st+3}')
            o.append(f'v_mul_f32 v{st+2}, v{st+3}, v{st+3}')
            o.append(f'v_mul_f32 v{st+2}, {f32(0.044715)}, v{st+2}')
            o.append(f'v_mul_f32 v{CON+1}, v{CON}, v{st+2}')
            o.append(f'v_mov_b32 v{CON+2}, v{st+1}')
        return o
    def kvaddr_ops(self):
        l, r_, c_, g_, t0, t1 = TMP, TMP + 1, TMP + 2, TMP + 3, TMP + 4, TMP + 5
        o = [f'v_lshrrev_b32 v{l}, 4, v{vL0}',
             f'v_bfe_u32 v{r_}, v{l}, 2, 2', f'v_and_b32 v{c_}, 3, v{l}', f'v_bfe_u32 v{g_}, v{l}, 4, 1',
             f'v_lshrrev_b32 v{t0}, 5, v{l}',
             f'v_lshl_add_u32 v{t0}, v{t0}, 3, v{r_}', f'v_lshlrev_b32 v{t0}, 6, v{t0}',
             f'v_lshrrev_b32 v{t1}, 1, v{c_}', f'v_lshl_add_u32 v{t0}, v{t1}, 3, v{t0}',
             f's_lshl_b32 s{sT4}, s{sW}, 13', f's_add_u32 s{sT4}, s{sT4}, {L_SCRT}',
             f'v_add_u32 v{t0}, s{sT4}, v{t0}',
             f'v_lshrrev_b32 v{r_}, 1, v{r_}', f'v_and_b32 v{t1}, 1, v{c_}',
             f'v_lshl_add_u32 v{vOWN}, v{t1}, 1, v{g_}', f'v_lshl_add_u32 v{vX0}, v{g_}, 1, v{t1}',
             f'v_xor_b32 v{vOWN}, v{vOWN}, v{r_}', f'v_xor_b32 v{vX0}, v{vX0}, v{r_}',
             f'v_lshl_add_u32 v{vOWN}, v{vOWN}, 4, v{t0}', f'v_lshl_add_u32 v{vX0}, v{vX0}, 4, v{t0}',
             f'v_xor_b32 v{vOTH}, 32, v{vOWN}', f'v_xor_b32 v{vX1}, 32, v{vX0}']
        return o
    def gemm(self, steps, fill=None, fill_per=4, at=None, lead=NAF-1, pair=True):
        p = self.p
        fill = list(fill or [])
        n = len(steps); issued = 0; at = at or {}
        for i in range(n):
            for f in at.get(i, []): f()
            while issued < n and issued <= i + lead:
                for f in at.get(('rd', issued), []): f()
                steps[issued][1](AF + 4 * (issued % NAF)); issued += 1
            acc, _, b, first = steps[i]
            if pair and PAIRW and i % 2 == 0 and i + 1 < n:
                p.touch([f'v{AF+4*((i+1)%NAF)+q}' for q in range(4)])
            c = '0' if first else vr(acc, 16)
            self.I(f'v_mfma_f32_32x32x16_bf16 {vr(acc,16)}, {vr(AF+4*(i%NAF),4)}, {vr(b,4)}, {c}')
            budget = fill_per
            while fill and budget > 0:
                t = fill.pop(0)
                if callable(t): t(); budget -= 1; continue
                self.I(t)
                budget -= 2 if t.split()[0] in ('v_exp_f32', 'v_rcp_f32', 'v_rsq_f32') else 1
        self.run(fill)
    def run(self, l):
        for t in l:
            if callable(t): t()
            else: self.I(t)
    def softmax2(self, P0, P1):
        I = self.I
        Ps = (P0, P1); m = (TMP, TMP + 2); s = (TMP + 4, TMP + 6)
        for a in range(2): I(f'v_max3_f32 v{m[a]}, v{Ps[a]}, v{Ps[a]+1}, v{Ps[a]+2}')
        for i in range(3, 15, 2):
            for a in range(2): I(f'v_max3_f32 v{m[a]}, v{m[a]}, v{Ps[a]+i}, v{Ps[a]+i+1}')
        for a in range(2): I(f'v_max_f32 v{m[a]}, v{m[a]}, v{Ps[a]+15}')
        for a in range(2): I(f'v_mul_f32_e64 v{m[a]}, -v{CON}, v{m[a]}')
        for i in range(0, 16, 2):
            for a in range(2):
                I(f'v_pk_fma_f32 {vr(Ps[a]+i,2)}, {vr(Ps[a]+i,2)}, {vr(CON,2)}, {vr(m[a],2)} op_sel_hi:[1,0,0]')
        for i in range(16):
            for a in range(2): I(f'v_exp_f32 v{Ps[a]+i}, v{Ps[a]+i}')
        for a in range(2): I(f'v_pk_add_f32 {vr(s[a],2)}, {vr(Ps[a],2)}, {vr(Ps[a]+2,2)}')
        for i in range(4, 16, 2):
            for a in range(2): I(f'v_pk_add_f32 {vr(s[a],2)}, {vr(s[a],2)}, {vr(Ps[a]+i,2)}')
        for a in range(2): I(f'v_add_f32 v{s[a]}, v{s[a]}, v{s[a]+1}')
        for a in range(2): I(f'v_rcp_f32 v{s[a]}, v{s[a]}')
        for i in range(0, 16, 2):
            for a in range(2):
                I(f'v_pk_mul_f32 {vr(Ps[a]+i,2)}, {vr(Ps[a]+i,2)}, {vr(s[a],2)} op_sel_hi:[1,0]')
        for i in range(8):
            for a in range(2): I(f'v_cvt_pk_bf16_f32 v{Ps[a]+i}, v{Ps[a]+2*i}, v{Ps[a]+2*i+1}')
    def rdaphi(self, A):
        self.I(f'ds_read_b128 {vr(A,4)}, v{vL2} offset:{L_APHI-131072}')
        self.I(f'ds_read_b128 {vr(A+4,4)}, v{vL2} offset:{L_APHI-131072+1024}')
    def feat(self, acc, P0, P1, A):
        I = self.I
        for i in range(8): I(f'v_cvt_pk_bf16_f32 v{acc+i}, v{acc+2*i}, v{acc+2*i+1}')
        I(f'v_mfma_f32_32x32x16_bf16 {vr(P0,16)}, {vr(A,4)}, {vr(acc,4)}, 0')
        I(f'v_mfma_f32_32x32x16_bf16 {vr(P1,16)}, {vr(A+4,4)}, {vr(acc+4,4)}, 0')
    def gelu_ops(self, Gr, Ur, packed):
        o = []
        if not packed:
            for i in range(0, 16, 2):
                t = [TMP + (i % 8), TMP + (i % 8) + 1]
                for a in range(2): o.append(f'v_mul_f32 v{t[a]}, v{Gr+i+a}, v{Gr+i+a}')
                for a in range(2): o.append(f'v_fma_f32 v{t[a]}, v{t[a]}, v{CON+1}, v{CON}')
                for a in range(2): o.append(f'v_mul_f32 v{t[a]}, v{t[a]}, v{Gr+i+a}')
                for a in range(2): o.append(f'v_exp_f32 v{t[a]}, v{t[a]}')
                for a in range(2): o.append(f'v_mul_f32 v{Ur+i+a}, v{Ur+i+a}, v{Gr+i+a}')
                for a in range(2): o.append(f'v_fma_f32 v{t[a]}, v{t[a]}, v{CON+2}, v{CON+2}')
                for a in range(2): o.append(f'v_rcp_f32 v{t[a]}, v{t[a]}')
                if i: o.append(f'v_cvt_pk_bf16_f32 v{Gr+i//2-1}, v{Ur+i-2}, v{Ur+i-1}')
                else: o.append('v_nop')
                for a in range(2): o.append(f'v_mul_f32 v{Ur+i+a}, v{Ur+i+a}, v{t[a]}')
            o.append(f'v_cvt_pk_bf16_f32 v{Gr+7}, v{Ur+14}, v{Ur+15}')
        else:
            for i0 in range(0, 16, 8):
                idx = range(i0, i0 + 8, 2)
                T = lambda i: vr(TMP + (i % 8), 2)
                for i in idx: o.append(f'v_pk_mul_f32 {T(i)}, {vr(Gr+i,2)}, {vr(Gr+i,2)}')
                for i in idx: o.append(f'v_pk_fma_f32 {T(i)}, {T(i)}, {vr(CON,2)}, {vr(CON,2)} op_sel:[0,1,0] op_sel_hi:[1,1,0]')
                for i in idx: o.append(f'v_pk_mul_f32 {T(i)}, {T(i)}, {vr(Gr+i,2)}')
                for i in range(8): o.append(f'v_exp_f32 v{TMP+i}, v{TMP+i}')
                for i in idx: o.append(f'v_pk_mul_f32 {vr(Ur+i,2)}, {vr(Ur+i,2)}, {vr(Gr+i,2)}')
                for i in idx: o.append(f'v_pk_fma_f32 {T(i)}, {T(i)}, {vr(CON+2,2)}, {vr(CON+2,2)} op_sel_hi:[1,0,0]')
                for i in range(8): o.append(f'v_rcp_f32 v{TMP+i}, v{TMP+i}')
                for i in idx: o.append(f'v_pk_mul_f32 {vr(Ur+i,2)}, {vr(Ur+i,2)}, {T(i)}')
                for i in idx: o.append(f'v_cvt_pk_bf16_f32 v{Gr+i//2}, v{Ur+i}, v{Ur+i+1}')
        return o
    def res_init(self, acc):
        for i in range(8):
            self.I(f'v_lshlrev_b32 v{acc+2*i}, 16, v{RES+i}')
            self.I(f'v_and_b32 v{acc+2*i+1}, s{sMASKHI}, v{RES+i}')
    def setown(self, base, khmul):
        I = self.I
        I(f's_lshr_b32 s{sT2}, s{sW}, 1')
        I(f's_mul_i32 s{sT3}, s{sT2}, {khmul+512}'); I(f's_add_u32 s{sT3}, s{sT3}, {base}')
        I(f's_xor_b32 s{sT4}, s{sT3}, 512')
        I(f'v_add_u32 v{vOWN}, s{sT3}, v{vHS}'); I(f'v_add_u32 v{vOTH}, s{sT4}, v{vHS}')
    def setex(self, exbase):
        I = self.I
        I(f's_lshl_b32 s{sT3}, s{sW}, 12'); I(f's_xor_b32 s{sT4}, s{sT3}, 8192')
        I(f's_add_u32 s{sT3}, s{sT3}, {exbase}'); I(f's_add_u32 s{sT4}, s{sT4}, {exbase}')
        I(f'v_add_u32 v{vX0}, s{sT3}, v{vL0}'); I(f'v_add_u32 v{vX1}, s{sT4}, v{vL0}')
    def exchange(self, own, oth, tmp):
        I = self.I
        for q in range(4):
            I(f'ds_write_b128 v{vX0}, {vr(oth+4*q,4)} offset:{q*1024}')
        self.barrier()
        for q in range(4):
            I(f'ds_read_b128 {vr(tmp+4*q,4)}, v{vX1} offset:{q*1024}')
        for q in range(4):
            for i in range(4 * q, 4 * q + 4, 2):
                I(f'v_pk_add_f32 {vr(own+i,2)}, {vr(own+i,2)}, {vr(tmp+i,2)}')
            for i in range(2 * q, 2 * q + 2):
                I(f'v_cvt_pk_bf16_f32 v{RES+i}, v{own+2*i}, v{own+2*i+1}')
    def xstore(self, sfr, sst):
        I = self.I
        I(f'buffer_store_dwordx4 {vr(RES,4)}, v{vL0}, {WS}, s{sfr} offen{self.sc}')
        I(f'buffer_store_dwordx4 {vr(RES+4,4)}, v{vL0}, {WS}, s{sfr} offen offset:1024{self.sc}')
        a = TMP
        for i in range(4): I(f'v_mov_b32 v{a+i}, 0')
        for i in range(8):
            I(f'v_dot2c_f32_bf16 v{a+2*(i&1)}, s{sONES}, v{RES+i}')
            I(f'v_dot2c_f32_bf16 v{a+1+2*(i&1)}, v{RES+i}, v{RES+i}')
        I(f'v_pk_add_f32 {vr(a,2)}, {vr(a,2)}, {vr(a+2,2)}')
        I(f'v_mov_b32 v{a+2}, v{a}'); I(f'v_mov_b32 v{a+3}, v{a+1}')
        I(f'v_permlane32_swap_b32 v{a+2}, v{a}'); I(f'v_permlane32_swap_b32 v{a+3}, v{a+1}')
        I(f'v_pk_add_f32 {vr(a,2)}, {vr(a,2)}, {vr(a+2,2)}')
        I('s_mov_b32 exec_hi, 0')
        I(f'buffer_store_dwordx2 {vr(a,2)}, v{vL8}, {WS}, s{sst} offen{self.sc}')
        I('s_mov_b32 exec_hi, -1')

    def main(self):
        p = self.p; I = self.I
        KN = NAME + '_kernel'
        p.raw(f'.globl {KN}\n.p2align 8\n.type {KN},@function\n{KN}:')
        I('s_cmp_ge_u32 s2, 256'); p.branch('s_cbranch_scc1 L_end')
        I('s_load_dwordx2 s[4:5], s[0:1], 80')
        if DBGT:
            I('s_load_dwordx2 s[60:61], s[0:1], 72'); I('s_memrealtime s[62:63]')
        if CPF:
            I('s_getpc_b64 s[64:65]')
            I('s_lshr_b32 s66, s2, 3'); I('s_and_b32 s66, s66, 7')
            I('v_lshlrev_b32 v20, 7, v0'); I('v_lshrrev_b32 v21, 6, v0')
            I(f'v_cmp_gt_u32 vcc, {CPF*1024:#x}, v20')
            I('v_cmp_eq_u32 s[68:69], s66, v21')
            I('s_and_b64 vcc, vcc, s[68:69]')
            I('s_and_saveexec_b64 s[66:67], vcc')
            snap = p.snapshot()
            I('global_load_dword v21, v20, s[64:65]')
            p.restore(snap)
            I('s_mov_b64 exec, s[66:67]')
        I(f'v_readfirstlane_b32 s{sW}, v0')
        I('v_and_b32 v0, 63, v0')
        I(f's_mov_b32 s6, {WS_BYTES:#x}'); I('s_mov_b32 s7, 0x20000')
        I(f's_lshr_b32 s{sW}, s{sW}, 6')
        I(f's_and_b32 s{sT0}, s2, 7'); I(f's_lshr_b32 s{sT1}, s2, 3')
        I(f's_lshr_b32 s{sJ}, s{sT1}, 1'); I(f's_and_b32 s{sT1}, s{sT1}, 1')
        I(f's_lshl_b32 s{sRB}, s{sT0}, 1'); I(f's_add_u32 s{sRB}, s{sRB}, s{sT1}')
        I(f's_mov_b32 s{sLAYER}, 0')
        I(f'v_lshlrev_b32 v{vL0}, 4, v0')
        I(f's_cmp_lt_u32 s{sJ}, 11'); I(f's_cselect_b32 s{sHEAVY}, 1, 0')
        I(f's_cmp_ge_u32 s{sW}, 4'); p.branch('s_cbranch_scc1 L_helper')
        self.cprologue()
        self.sc = ' sc1' if FORCESLOW else ''; self.x = ''
        snap = p.snapshot()
        self.body(True)
        p.restore(snap)
        self.sc = ' sc1'; self.x = 's'
        self.body(False)
        p.label('L_helper')
        self.helper()
        p.label('L_end')
        I('s_endpgm')
        for t in self.ool: p.raw(t)

    def trbase(self, dst, lane, kind, t0, t1):
        I = self.I
        I(f'v_bfe_u32 v{t0}, v{lane}, 4, 1')
        I(f'v_and_b32 v{t1}, 1, v{lane}')
        if kind == 'std':
            I(f'v_lshl_add_u32 v{t0}, v{t0}, 1, v{t1}')
        else:
            I(f'v_lshl_add_u32 v{t0}, v{t1}, 1, v{t0}')
        I(f'v_bfe_u32 v{t1}, v{lane}, 1, 1')
        I(f'v_lshl_add_u32 v{t0}, v{t0}, 1, v{t1}')
        I(f'v_bfe_u32 v{t1}, v{lane}, 2, 2')
        I(f'v_lshl_add_u32 v{t0}, v{t1}, 3, v{t0}')
        I(f'v_lshrrev_b32 v{t1}, 5, v{lane}')
        I(f'v_lshl_add_u32 v{t0}, v{t1}, 7, v{t0}')
        I(f'v_lshlrev_b32 v{dst}, 3, v{t0}')

    def cprologue(self):
        p = self.p; I = self.I
        I('s_load_dwordx2 s[96:97], s[0:1], 0')
        I('s_load_dwordx2 s[8:9], s[0:1], 64')
        I(f's_mov_b32 s98, {S*D*2:#x}'); I('s_mov_b32 s99, 0x20000')
        I(f's_mov_b32 s10, {S*D*2:#x}'); I('s_mov_b32 s11, 0x20000')
        I('s_setprio 2')
        I(f's_lshl_b32 s{sRT}, s{sRB}, 2')
        I(f's_lshr_b32 s{sT0}, s{sJ}, 3'); I(f's_lshl_b32 s{sT0}, s{sT0}, 1')
        I(f's_and_b32 s{sT1}, s{sW}, 1'); I(f's_add_u32 s{sT0}, s{sT0}, s{sT1}')
        I(f's_add_u32 s{sRT2}, s{sRT}, s{sT0}')
        I(f's_add_u32 s{sRT}, s{sRT}, s{sW}')
        I(f's_lshr_b32 s{sT2}, s{sW}, 1')
        I(f's_and_b32 s{sT3}, s{sJ}, 7'); I(f's_lshl_b32 s{sCT}, s{sT3}, 1'); I(f's_add_u32 s{sCT}, s{sCT}, s{sT2}')
        I(f's_lshl_b32 s{sT3}, s{sRT}, 15'); I(f's_lshl_b32 s{sT4}, s{sW}, 15')
        for f in range(16): I(f'v_xor_b32 v{ACC+f}, {f*16}, v{vL0}')
        p.wait_hard(lg=0)
        self.ts(0)
        for i in range(32):
            if i % 4 == 0:
                I(f's_add_u32 m0, s{sT4}, {i*1024}')
                if i: I(f's_add_u32 s{sT3}, s{sT3}, 4096')
            I(f'buffer_load_dwordx4 v{ACC+(i&15)}, {XS}, s{sT3} offen offset:{(i%4)*1024} lds')
        t0, t1, t2 = TMP, TMP + 1, TMP + 2
        I(f'v_and_b32 v{t1}, 31, v0')
        I(f'v_lshrrev_b32 v{t2}, 5, v0')
        I(f'v_lshlrev_b32 v{t0}, 10, v{t1}'); I(f'v_lshl_add_u32 v{t0}, v{t2}, 5, v{t0}')
        I(f's_lshl_b32 s{sT3}, s{sRT2}, 15'); I(f's_lshl_b32 s{sT5}, s{sCT}, 6'); I(f's_add_u32 s{sT3}, s{sT3}, s{sT5}')
        I(f'buffer_load_dwordx4 {vr(RES,4)}, v{t0}, {XS}, s{sT3} offen')
        I(f'buffer_load_dwordx4 {vr(RES+4,4)}, v{t0}, {XS}, s{sT3} offen offset:16')
        def lin(dst, base, terms):
            first = True
            for sreg, mul in terms:
                tgt = dst if first else sT5
                I(f's_mul_i32 s{tgt}, s{sreg}, {mul}')
                if not first: I(f's_add_u32 s{dst}, s{dst}, s{sT5}')
                first = False
            I(f's_add_u32 s{dst}, s{dst}, {base:#x}')
        B = LB0
        lin(sKVR, B + KVP, [(sJ, 4 * 16 * KVS), (sW, 16 * KVS)])
        lin(sKVW, B + KVP, [(sJ, 4 * 16 * KVS), (sW, 32 * KVS), (sRB, KVS)])
        lin(sOFW, B + OF, [(sRT, 32768), (sJ, 2048)])
        lin(sOFR, B + OF, [(sRT2, 32768), (sT2, 16384)])
        lin(sX1W, B + X1F, [(sRT2, 32768), (sCT, 2048)])
        lin(sST1W, B + ST1, [(sRT2, 4096), (sCT, 256)])
        lin(sX1R, B + X1F, [(sRT, 32768)]); lin(sST1R, B + ST1, [(sRT, 4096)])
        lin(sHFW, B + HF, [(sRT, 86 * 1024), (sJ, 1024)])
        lin(sHFR, B + HF, [(sRT2, 86 * 1024), (sT2, 43 * 1024)])
        lin(sXNW, B + LBS + XIN, [(sRT2, 32768), (sCT, 2048)])
        lin(sSTNW, B + LBS + STIN, [(sRT2, 4096), (sCT, 256)])
        fk = lambda kind: FLG + kind * 4 * FL
        lin(sFOCW, fk(K_OC), [(sRB, 8192), (sW, FL), (sJ, 4)])
        lin(sFOCR, fk(K_OC), [(sRB, 8192), (sT0, FL), (sT2, 32)])
        lin(sFX1W, fk(K_X1), [(sRB, 8192), (sT0, FL), (sCT, 4)])
        lin(sFX1R, fk(K_X1), [(sRB, 8192), (sW, FL)])
        lin(sFHCW, fk(K_HC), [(sRB, 8192), (sW, FL), (sJ, 4)])
        lin(sFHCR, fk(K_HC), [(sRB, 8192), (sT0, FL)])
        lin(sFXW, fk(K_XC), [(sRB, 8192), (sT0, FL), (sCT, 4)])
        lin(sFXR, fk(K_XC), [(sRB, 8192), (sW, FL)])
        lin(sFAR, FLG + F_AR, [(sJ, 8192)])
        lin(sFARW, FLG + F_AR, [(sJ, 8192), (sW, FL)])
        I(f's_mov_b32 s{sHALF}, 0'); I(f's_mov_b32 s{sHALF+1}, -1')
        I(f's_mov_b32 s{sONES}, 0x3f803f80'); I(f's_mov_b32 s{sSELLO}, 0x3f80'); I(f's_mov_b32 s{sSELHI}, 0x3f800000')
        I(f's_mov_b32 s{sMASKHI}, 0xffff0000')
        t3 = TMP + 3
        I(f'v_lshlrev_b32 v{vL8}, 3, v0'); I(f'v_add_u32 v{vL2}, 0x20000, v{vL0}')
        I(f'v_mov_b32 v{t3}, 0x80000000')
        I(f'v_mul_u32_u24 v{vAR}, 320, v{t2}')
        I(f'v_lshl_add_u32 v{vAR}, v{t1}, 4, v{vAR}')
        I(f'v_cmp_gt_u32 vcc, 20, v{t1}')
        I(f'v_cndmask_b32 v{vAR}, v{t3}, v{vAR}, vcc')
        I(f'v_min_u32 v{vKVA}, 16, v{t1}')
        I(f'v_lshl_add_u32 v{vKVA}, v{t2}, 5, v{vKVA}')
        I(f'v_lshlrev_b32 v{vKVA}, 4, v{vKVA}')
        I(f'v_add_u32 v{vKVA}, {L_KVA}, v{vKVA}')
        I(f'v_lshrrev_b32 v{vPH}, 1, v{t1}'); I(f'v_and_b32 v{vPH}, 3, v{vPH}')
        I(f'v_lshlrev_b32 v{t3}, 1, v{t2}'); I(f'v_xor_b32 v{vPH}, v{vPH}, v{t3}')
        I(f'v_lshlrev_b32 v{vPH}, 4, v{vPH}')
        I(f'v_lshl_add_u32 v{vPH}, v{t1}, 6, v{vPH}')
        I(f's_lshl_b32 s{sT3}, s{sW}, 11'); I(f's_add_u32 s{sT3}, s{sT3}, {L_SCRT}')
        I(f'v_add_u32 v{vPH}, s{sT3}, v{vPH}')
        I(f'v_lshlrev_b32 v{vEXT}, 3, v{t1}'); I(f'v_add_u32 v{vEXT}, {RESV}, v{vEXT}')
        I(f'v_mov_b32 v{BEXT+2}, 0'); I(f'v_mov_b32 v{BEXT+3}, 0'); I(f'v_mov_b32 v{vONE}, 1')
        I(f'v_and_b32 v{vFO}, 15, v0'); I(f'v_lshlrev_b32 v{vFO}, 2, v{vFO}')
        va = ACC + 16
        I(f'v_and_b32 v{va}, 15, v0'); I(f'v_xor_b32 v{va}, v{va}, v{t3}'); I(f'v_lshlrev_b32 v{va}, 4, v{va}')
        I(f'v_lshl_add_u32 v{va}, v{t1}, 10, v{va}'); I(f'v_add_u32 v{va}, s{sT4}, v{va}')
        bbs = [0, 1, 4, 5, 8, 9, 12, 13]
        for q, bb in enumerate(bbs[1:]): I(f'v_xor_b32 v{va+1+q}, {bb*16}, v{va}')
        self.trbase(vT0, 0, 'std', t0, t1)
        I(f'v_add_u32 v{vT1}, 0x10000, v{vT0}')
        self.trbase(vHS, 0, 'hs', t0, t1)
        self.run(self.kvaddr_ops())
        ST = ACC + 48
        for i in range(4): I(f'v_mov_b32 v{ST+i}, 0')
        p.wait_hard(vm=2)
        for ks in range(32):
            c = 4 * (ks >> 1) + (ks & 1)
            I(f'ds_read_b128 {vr(XB+4*ks,4)}, v{va+bbs.index(c & 15)} offset:{(c>>4)*256}')
            if ks in (14, 21, 28): p.wait(lg=8)
        self.barrier()
        for r in range(128):
            I(f'v_dot2c_f32_bf16 v{ST+2*(r&1)}, s{sONES}, v{XB+r}')
            I(f'v_dot2c_f32_bf16 v{ST+1+2*(r&1)}, v{XB+r}, v{XB+r}')
        I(f'v_add_f32 v{ST}, v{ST}, v{ST+2}'); I(f'v_add_f32 v{ST+1}, v{ST+1}, v{ST+3}')
        self.run(self.stats_fin(ST, 1))
        self.bar()
        self.ts(1)
        self.kvloop([], {})
        p.wait(vm=0)

    def kvloop(self, fill, at):
        I = self.I
        aK, aV = ACC, ACC + 16
        steps = []
        for ks in range(32):
            steps.append((aK, (lambda d, ks=ks: self.rdstrip(d, 0, ks)), XB + 4 * ks, ks == 0))
            steps.append((aV, (lambda d, ks=ks: self.rdstrip(d, 8, ks)), XB + 4 * ks, ks == 0))
        steps.append((aK, (lambda d: I(f'ds_read_b64 {vr(d,2)}, v{vEXT} offset:0')), BEXT, False))
        steps.append((aV, (lambda d: I(f'ds_read_b64 {vr(d,2)}, v{vEXT} offset:256')), BEXT, False))
        at.setdefault(BE, []).append(self.bar)
        at.setdefault(64, []).append(self.barrier)
        at.setdefault(65, []).append(lambda: self.rdaphi(AF + 8))
        self.gemm(steps, fill=fill, fill_per=2, at=at)

    def body(self, fast):
        p = self.p; I = self.I; x = self.x
        p.label('L_body' + x)
        p.lg = [(-1, [f'v{AF+8+q}' for q in range(4)]), (-2, [f'v{AF+12+q}' for q in range(4)])]
        self.ts(2)
        aK, aV = ACC, ACC + 16
        P0, P1 = ACC + 32, ACC + 48
        self.feat(aK, P0, P1, AF + 8)
        for i in range(0, 16, 2):
            I(f'v_pk_mul_f32 {vr(aV+i,2)}, {vr(aV+i,2)}, {vr(CON+2,2)} op_sel_hi:[1,0]')
        for i in range(8): I(f'v_cvt_pk_bf16_f32 v{aV+i}, v{aV+2*i}, v{aV+2*i+1}')
        for i in range(4): I(f'v_mov_b32 v{aV+8+i}, s{sONES}')
        I(f'v_cndmask_b32 v{aV+12}, 0, 48, s[{sHALF}:{sHALF+1}]')
        I(f'v_xor_b32 v{aV+12}, v{aV+12}, v{vPH}')
        I(f'v_xor_b32 v{aV+13}, 32, v{aV+12}')
        I(f'v_xor_b32 v{aV+14}, 16, v{vPH}')
        I(f'ds_write_b128 v{aV+12}, {vr(aV,4)} offset:16384')
        I(f'ds_write_b128 v{aV+12}, {vr(aV+4,4)} offset:24576')
        I(f'ds_write_b128 v{aV+13}, {vr(aV+8,4)} offset:16384')
        I(f'ds_write_b128 v{aV+13}, {vr(aV+8,4)} offset:24576')
        self.softmax2(P0, P1)
        I(f'ds_write_b128 v{vPH}, {vr(P0,4)}'); I(f'ds_write_b128 v{aV+14}, {vr(P0+4,4)}')
        I(f'ds_write_b128 v{vPH}, {vr(P1,4)} offset:8192'); I(f'ds_write_b128 v{aV+14}, {vr(P1+4,4)} offset:8192')
        self.barrier()
        self.ts(3)
        I(f's_cmp_ge_u32 s{sW}, 2'); p.branch(f's_cbranch_scc1 L_nokv{x}')
        A = ACC; Bq = ACC + 32; Dk = AF
        def mm(k): I(f'v_mfma_f32_32x32x16_bf16 {vr(Dk,16)}, {vr(A+4*k,4)}, {vr(Bq+4*k,4)}, {"0" if k==0 else vr(Dk,16)}')
        for ks in range(8):
            I(f'ds_read_b64_tr_b16 {vr(A+4*ks,2)}, v{vOWN} offset:{ks*1024}')
            I(f'ds_read_b64_tr_b16 {vr(A+4*ks+2,2)}, v{vOTH} offset:{ks*1024+256}')
            I(f'ds_read_b64_tr_b16 {vr(Bq+4*ks,2)}, v{vX0} offset:{16384+ks*1024}')
            I(f'ds_read_b64_tr_b16 {vr(Bq+4*ks+2,2)}, v{vX1} offset:{16384+ks*1024+256}')
            if ks >= 2: mm(ks - 2)
        mm(6); mm(7)
        I(f's_add_u32 s{sT0}, s{sKVW}, {16*KVS}')
        for i in range(4): I(f'v_cvt_pk_bf16_f32 v{Dk+i}, v{Dk+2*i}, v{Dk+2*i+1}')
        I(f'buffer_store_dwordx4 {vr(Dk,4)}, v{vAR}, {WS}, s{sKVW} offen sc1')
        for i in range(4, 8): I(f'v_cvt_pk_bf16_f32 v{Dk+i}, v{Dk+2*i}, v{Dk+2*i+1}')
        I(f'buffer_store_dwordx4 {vr(Dk+4,4)}, v{vAR}, {WS}, s{sT0} offen sc1')
        p.wait(vm=0)
        I('s_mov_b64 exec, 1')
        I(f'buffer_atomic_add v{vONE}, off, {WS}, s{sFARW} sc1')
        I('s_mov_b64 exec, -1')
        p.label(f'L_nokv{x}')
        p.vm = []
        aQ = ACC
        steps = [(aQ, (lambda d, ks=ks: self.rdstrip(d, 16, ks)), XB + 4 * ks, ks == 0) for ks in range(32)]
        self.gemm(steps)
        self.barrier()
        I(f'ds_read_b64 {vr(AF,2)}, v{vEXT} offset:512')
        self.rdaphi(AF + 8)
        if fast and not FORCESLOW:
            I(f'v_mov_b32 v{TMP}, {L_MODE}')
            I(f'ds_read_b32 v{TMP}, v{TMP}')
            I(f'v_readfirstlane_b32 s{sPOLL}, v{TMP}')
            I(f's_cmp_eq_u32 s{sPOLL}, 0')
            p.branch('s_cbranch_scc1 L_afterqs')
        p.wait(lg=0)
        p.label('L_afterq' + x)
        I(f'v_mfma_f32_32x32x16_bf16 {vr(aQ,16)}, {vr(AF,4)}, {vr(BEXT,4)}, {vr(aQ,16)}')
        self.feat(aQ, P0, P1, AF + 8)
        self.softmax2(P0, P1)
        R = XB + 64
        for i in range(8): I(f'v_mov_b32 v{R+i}, 0')
        I(f's_lshl_b32 s{sT2}, s{sW}, 10')
        I(f'v_add_u32 v{TMP}, s{sT2}, v{vL2}')
        I(f's_add_u32 s{sT1}, s{sKVR}, 4096'); I(f's_add_u32 s{sT0}, s{sKVR}, 8192')
        self.ts(4)
        I(f's_cmp_lg_u32 s{sW}, 3'); p.branch(f's_cbranch_scc1 L_arok{x}')
        I(f'v_lshlrev_b32 v{TMP+1}, 3, v{vL0}')
        I(f's_mov_b32 s{sITER}, 0x8000')
        I('s_mov_b64 exec, 3')
        p.label(f'L_arp{x}')
        I(f'buffer_load_dword v{vP}, v{TMP+1}, {WS}, s{sFAR} offen sc1')
        I(f's_sub_u32 s{sITER}, s{sITER}, 1')
        p.wait(vm=0)
        I(f'v_cmp_gt_u32 vcc, 16, v{vP}')
        p.xbranch(f's_cbranch_vccz L_arq{x}')
        if SLEEP: I(f's_sleep {SLEEP}')
        p.xbranch(f's_cbranch_scc0 L_arp{x}')
        p.xlabel(f'L_arq{x}')
        I('s_mov_b64 exec, -1')
        p.label(f'L_arok{x}')
        self.bar()
        self.ts(5)
        for b in range(16):
            off = b * KVS; q = off // 4096
            I(f'buffer_load_dwordx4 {vr(XB+4*b,4)}, v{vAR}, {WS}, s{[sKVR,sT1,sT0][q]} offen offset:{off-q*4096} sc1')
        for b in range(16):
            for i in range(4):
                I(f'v_dot2c_f32_bf16 v{R+2*i}, s{sSELLO}, v{XB+4*b+i}')
                I(f'v_dot2c_f32_bf16 v{R+2*i+1}, s{sSELHI}, v{XB+4*b+i}')
        for i in range(4): I(f'v_cvt_pk_bf16_f32 v{R+i}, v{R+2*i}, v{R+2*i+1}')
        I(f'ds_write_b128 v{TMP}, {vr(R,4)} offset:{L_KVA-131072}')
        self.barrier()
        self.ts(6)
        for q in (0, 2, 1, 3): I(f'ds_read_b128 {vr(AF+4*q,4)}, v{vKVA} offset:{q*1024}')
        O0, O1 = ACC, ACC + 16
        I(f'v_mfma_f32_32x32x16_bf16 {vr(O0,16)}, {vr(AF,4)}, {vr(P0,4)}, 0')
        I(f'v_mfma_f32_32x32x16_bf16 {vr(O1,16)}, {vr(AF+8,4)}, {vr(P1,4)}, 0')
        I(f'v_mfma_f32_32x32x16_bf16 {vr(O0,16)}, {vr(AF+4,4)}, {vr(P0+4,4)}, {vr(O0,16)}')
        I(f'v_mfma_f32_32x32x16_bf16 {vr(O1,16)}, {vr(AF+12,4)}, {vr(P1+4,4)}, {vr(O1,16)}')
        self.setown(16 * G, 32768)
        self.setex(L_EX2)
        I(f'v_and_b32 v{TMP}, 28, v{vFO}')
        for O in (O0, O1):
            I(f'v_add_f32 v{O+8}, {f32(1e-6)}, v{O+8}')
            I(f'v_rcp_f32 v{O+8}, v{O+8}')
            for i in range(0, 8, 2): I(f'v_pk_mul_f32 {vr(O+i,2)}, {vr(O+i,2)}, {vr(O+8,2)} op_sel_hi:[1,0]')
            for i in range(4): I(f'v_cvt_pk_bf16_f32 v{O+i}, v{O+2*i}, v{O+2*i+1}')
            I(f'buffer_store_dwordx4 {vr(O,4)}, v{vL0}, {WS}, s{sOFW} offen offset:{0 if O==O0 else 1024}{self.sc}')
        own, oth = ACC + 32, ACC + 48
        self.res_init(own)
        self.signal(sFOCW)
        self.ts(7)
        self.poll(sFOCR, 0, TMP)
        self.ts(8)
        self.loadfrags(sOFR, [(XB + 4 * k, k) for k in range(NUP2)])
        steps = []
        for g in range(16):
            steps.append((own, (lambda d, o=g * 2048: self.rdtr(d, vOWN, o)), XB + 4 * g, False))
            steps.append((oth, (lambda d, o=g * 2048: self.rdtr(d, vOTH, o)), XB + 4 * g, g == 0))
        self.gemm(steps, at=self.later(sOFR, 16, NUP2))
        self.ts(9)
        self.exchange(own, oth, ACC)
        self.xstore(sX1W, sST1W)
        self.signal(sFX1W)
        self.ts(10)
        self.poll(sFX1R)
        self.ts(11)
        ST = ACC + 48
        self.loadfrags(sX1R, [(XB + 4 * k, k) for k in range(4)])
        self.loadstats(ST, sST1R)
        self.loadfrags(sX1R, [(XB + 4 * k, k) for k in range(4, NUP)])
        def unit(u, region, fill, fill_per, at):
            aG, aU = ACC + 32 * (u & 1), ACC + 32 * (u & 1) + 16
            steps = []
            for ks in range(32):
                steps.append((aG, (lambda d, ks=ks: self.rdstrip(d, region, ks)), XB + 4 * ks, ks == 0))
                steps.append((aU, (lambda d, ks=ks: self.rdstrip(d, region + 8, ks)), XB + 4 * ks, ks == 0))
            steps.append((aG, (lambda d: I(f'ds_read_b64 {vr(d,2)}, v{vEXT} offset:{1024+u*512}')), BEXT, False))
            steps.append((aU, (lambda d: I(f'ds_read_b64 {vr(d,2)}, v{vEXT} offset:{1024+u*512+256}')), BEXT, False))
            at.setdefault(64, []).append(self.barrier)
            self.gemm(steps, fill=fill, fill_per=fill_per, at=at)
        ids = []
        def hstore(u):
            Gr = ACC + 32 * (u & 1)
            def f():
                I(f's_add_u32 s{sT2}, s{sHFW}, {16*u*1024}'); I(f's_add_u32 s{sT3}, s{sHFW}, {(43+16*u)*1024}')
                ids.clear()
                ids.append(I(f'buffer_store_dwordx4 {vr(Gr,4)}, v{vL0}, {WS}, s{sT2} offen{self.sc}'))
                ids.append(I(f'buffer_store_dwordx4 {vr(Gr+4,4)}, v{vL0}, {WS}, s{sT3} offen{self.sc}'))
            return f
        def gel(u, packed):
            return self.gelu_ops(ACC + 32 * (u & 1), ACC + 32 * (u & 1) + 16, packed) + [hstore(u)]
        def sig(n):
            def f():
                assert len(ids) == 2
                self.signal(sFHCW, (n * 4 * FL,), ids); ids.clear()
            return f
        at = self.later(sX1R, 32, NUP)
        at.setdefault(BM, []).append(self.bar)
        unit(0, 0, [lambda: None] * 16 + self.stats_red(ST) + self.stats_fin(ST, 3), 2, at)
        self.ts(12)
        unit(1, 16, gel(0, False), FP, {BU1: [self.bar], 65: [sig(0)]})
        self.ts(13)
        I(f's_cmp_eq_u32 s{sHEAVY}, 0'); p.branch(f's_cbranch_scc1 L_light{x}')
        snap = p.snapshot()
        P0I = env('P0I', 24)
        at = {B7B: [self.bar], P0I: [lambda: self.poll_issue(sFHCR, 0)], P0I + 6: [lambda: self.poll_check(sFHCR, 0)], 65: [sig(1)]}
        for k in range(16):
            at.setdefault(max(P0I + 6 + 2 * k, 2 * k + 2), []).append(lambda k=k: self.loadfrags(sHFR, [(XB + 4 * k, k)]))
        unit(2, 0, gel(1, False), FP, at)
        self.poll_issue(sFHCR, 4 * FL)
        g2 = gel(2, True)
        self.run(g2[:40])
        self.poll_check(sFHCR, 4 * FL)
        self.loadfrags(sHFR, [(XB + 4 * k, k) for k in range(16, 24)])
        self.run(g2[40:])
        self.loadfrags(sHFR, [(XB + 4 * k, k) for k in range(24, 32)])
        snap2 = p.snapshot(); ids2 = list(ids)
        p.branch(f's_branch L_p3done{x}')
        p.label(f'L_light{x}')
        p.restore(snap)
        self.bar(); self.bar()
        self.run(gel(1, True))
        self.signal(sFHCW, (4 * FL,))
        self.poll(sFHCR, 0)
        self.loadfrags(sHFR, [(XB + 4 * k, k) for k in range(16)])
        self.poll(sFHCR, 4 * FL)
        self.loadfrags(sHFR, [(XB + 4 * k, k) for k in range(16, 32)])
        p.wait(vm=0)
        p.label(f'L_p3done{x}')
        p.restore(snap2)
        self.ts(14)
        self.res_init(own)
        self.setex(L_EX4)
        steps = []; at = {}
        cur = None
        for g in range(43):
            a = w4_slot(g) * G
            base = a // 65536 * 65536
            if base != cur:
                cur = base
                at.setdefault(('rd', 2 * g), []).append(lambda b=base: self.setown(b, 2048))
            steps.append((own, (lambda d, o=a - base: self.rdtr(d, vOWN, o)), XB + 4 * (g % 32), False))
            steps.append((oth, (lambda d, o=a - base: self.rdtr(d, vOTH, o)), XB + 4 * (g % 32), g == 0))
        at.setdefault(env('S2AT', 6), []).append(lambda: self.signal(sFHCW, (8 * FL,), ids2))
        P2I = env('P2I', 30)
        at.setdefault(P2I, []).append(lambda: self.poll_issue(sFHCR, 8 * FL))
        at.setdefault(P2I + 6, []).append(lambda: self.poll_check(sFHCR, 8 * FL))
        for k in range(32, 43):
            at.setdefault(P2I + 6 + (k - 32), []).append(lambda k=k: self.loadfrags(sHFR, [(XB + 4 * (k % 32), k)]))
        at.setdefault(env('B10', 20), []).append(self.bar)
        at.setdefault(env('B11', 64), []).append(self.bar)
        self.gemm(steps, at=at)
        self.ts(15)
        self.exchange(own, oth, ACC)
        I(f's_cmp_eq_u32 s{sLAYER}, 1'); p.branch(f's_cbranch_scc1 L_final{x}')
        self.xstore(sXNW, sSTNW)
        for s in LAY_A: I(f's_add_u32 s{s}, s{s}, {LBS:#x}')
        for s in LAY_F: I(f's_add_u32 s{s}, s{s}, {FLS}')
        I(f's_add_u32 s{sFAR}, s{sFAR}, 256'); I(f's_add_u32 s{sFARW}, s{sFARW}, 256')
        I(f's_mov_b32 s{sLAYER}, 1')
        I(f's_add_u32 s{sXNW}, s{sX1R}, {(XIN - X1F) & 0xffffffff:#x}'); I(f's_add_u32 s{sSTNW}, s{sST1R}, {(STIN - ST1) & 0xffffffff:#x}')
        self.signal(sFXW)
        self.ts(16)
        self.ts_save()
        self.ts(0)
        self.poll(sFXR)
        self.loadfrags(sXNW, [(XB + 4 * k, k) for k in range(4)])
        self.loadstats(ST, sSTNW)
        self.loadfrags(sXNW, [(XB + 4 * k, k) for k in range(4, NUP)])
        self.bar()
        self.ts(1)
        self.kvloop(self.kvaddr_ops() + self.stats_red(ST) + self.stats_fin(ST, 1), self.later(sXNW, 32, NUP))
        p.wait(vm=0)
        p.branch(f's_branch L_body{x}')
        p.label(f'L_final{x}')
        p.vm = []; p.lg = []
        t0, t1, t2 = TMP, TMP + 1, TMP + 2
        I(f'v_lshrrev_b32 v{t0}, 4, v{vL0}'); I(f'v_and_b32 v{t1}, 31, v{t0}'); I(f'v_lshrrev_b32 v{t2}, 5, v{t0}')
        I(f'v_lshlrev_b32 v{t0}, 10, v{t1}'); I(f'v_lshl_add_u32 v{t0}, v{t2}, 5, v{t0}')
        I(f's_lshl_b32 s{sT0}, s{sRT2}, 15'); I(f's_lshl_b32 s{sT1}, s{sCT}, 6'); I(f's_add_u32 s{sT0}, s{sT0}, s{sT1}')
        I(f'buffer_store_dwordx4 {vr(RES,4)}, v{t0}, {OUT}, s{sT0} offen')
        I(f'buffer_store_dwordx4 {vr(RES+4,4)}, v{t0}, {OUT}, s{sT0} offen offset:16')
        if TS:
            p.wait(vm=0)
            self.ts(16)
            self.ts_flush(vP, TMP + 4, vL0)
        if DBGT:
            p.wait(vm=0)
            I('s_memrealtime s[64:65]'); p.wait_hard(lg=0)
            I('s_not_b32 s62, s62')
            I('s_mov_b64 exec, 1')
            I(f'v_mov_b32 v{t0}, 0'); I(f'v_mov_b32 v{t1}, s62'); I(f'v_mov_b32 v{t2}, s64')
            I(f'global_atomic_umax v{t0}, v{t1}, s[60:61] offset:4 sc1')
            I(f'global_atomic_umax v{t0}, v{t2}, s[60:61] offset:8 sc1')
            p.wait(vm=0)
        I('s_endpgm')

    def colsum(self, w0, nw, strip, ext):
        p = self.p; I = self.I
        E = self.lab('cse'); L = self.lab('csl')
        I(f's_sub_u32 s{sA}, s{sW}, {w0}'); I(f's_cmp_ge_u32 s{sA}, {nw}'); p.branch(f's_cbranch_scc1 {E}')
        I(f's_lshl_b32 s{sB}, s{sA}, 15'); I(f's_add_u32 s{sB}, s{sB}, {strip*G}')
        I(f'v_add_u32 v{hB}, s{sB}, v{hT0}')
        I(f'v_mov_b32 v{hA0}, 0'); I(f'v_mov_b32 v{hA1}, 0')
        offs = [0, 512, 2048, 2560]
        p.wait(lg=0)
        for q in range(4): self.rdtr(hR + 4 * q, hB, offs[q])
        I(f's_mov_b32 s{sM}, 8')
        p.label(L)
        for q in range(4):
            p.wait_hard(lg=6); p.lg = []
            for e in range(4): I(f'v_dot2c_f32_bf16 v{hA0+(e&1)}, s{sONES}, v{hR+4*q+e}')
            self.rdtr(hR + 4 * q, hB, 4096 + offs[q]); p.lg = []
        I(f'v_add_u32 v{hB}, 4096, v{hB}')
        I(f's_sub_u32 s{sM}, s{sM}, 1'); I(f's_cmp_lg_u32 s{sM}, 0')
        p.branch(f's_cbranch_scc1 {L}')
        p.wait_hard(lg=0)
        I(f'v_add_f32 v{hA0}, v{hA0}, v{hA1}')
        I(f'v_mov_b32 v{hA1}, v{hA0}')
        I(f'v_permlane32_swap_b32 v{hA1}, v{hA0}')
        I(f'v_add_f32 v{hA0}, v{hA0}, v{hA1}')
        I(f'v_cvt_pk_bf16_f32 v{hA1}, v{hA0}, v{hA0}'); I(f'v_and_b32 v{hA1}, 0xffff0000, v{hA1}'); I(f'v_sub_f32 v{hA1}, v{hA0}, v{hA1}')
        I(f'v_cvt_pk_bf16_f32 v{hR}, v{hA0}, v{hA1}'); I(f'v_mov_b32 v{hR+1}, v{hR}')
        I(f'v_and_b32 v{hB}, 31, v0'); I(f'v_lshlrev_b32 v{hB}, 3, v{hB}')
        I(f's_lshl_b32 s{sB}, s{sA}, 8'); I(f's_add_u32 s{sB}, s{sB}, {ext}')
        I(f'v_add_u32 v{hB}, s{sB}, v{hB}')
        I(f'ds_write_b64 v{hB}, {vr(hR,2)}')
        p.wait(lg=0)
        p.label(E)
    def l0(self, fn):
        p = self.p; E = self.lab('l0e')
        self.I(f's_cmp_lg_u32 s{sLAYER}, 0'); p.branch(f's_cbranch_scc1 {E}')
        fn()
        p.label(E)
    def ldstrip(self, srd, voff, stride, col_s, dst, lds=None):
        I = self.I
        for q in range(8):
            s = col_s
            if q:
                s = sA + (q & 1)
                I(f's_add_u32 s{s}, s{col_s}, {q*64*stride}')
            if lds is None:
                I(f'buffer_load_dwordx4 {vr(dst+4*q,4)}, v{voff}, {sq(srd)}, s{s} offen')
            else:
                I(f's_add_u32 m0, s{sM+1}, {lds*G+q*4096}')
                I(f'buffer_load_dwordx4 v{voff}, {sq(srd)}, s{s} offen lds')
    def wr(self, src, n, grp):
        for q in range(n):
            a = grp * G + q * 4096
            self.I(f'ds_write_b128 v{hL0 + a // 65536}, {vr(src+4*q,4)} offset:{a%65536}')
            if q == 13: self.p.wait_hard(lg=8)
    def w4dma(self, g0, g1):
        I = self.I
        for g in range(g0, g1):
            s = sA + (g & 1)
            I(f's_add_u32 s{s}, s{self.sW4}, {g*32768}')
            I(f's_add_u32 m0, s{sM+1}, {w4_slot(g)*G}')
            I(f'buffer_load_dwordx4 v{hG2}, {sq(hWD)}, s{s} offen lds')
    def helper(self):
        p = self.p; I = self.I
        p.vm = []; p.lg = []
        bar = self.bar
        def hbar(): p.wait_hard(lg=0); I('s_barrier')
        I(f's_load_dwordx4 {sq(hW1)}, s[0:1], 8'); I(f's_load_dwordx4 {sq(hWG)}, s[0:1], 40')
        I(f's_load_dwordx2 s[{hWO}:{hWO+1}], s[0:1], 24'); I(f's_load_dwordx2 s[{hWD}:{hWD+1}], s[0:1], 56')
        I(f's_load_dwordx2 s[{sDB}:{sDB+1}], s[0:1], 72')
        sK, sU, sW2, sW4, sPF = 53, 54, 55, 55, 57
        self.sW4 = sW4
        sH1 = sM + 1
        I(f's_sub_u32 s{sH}, s{sW}, 4'); I(f's_and_b32 s{sCC}, s{sJ}, 7')
        I(f's_lshl_b32 s{sH1}, s{sH}, 10')
        I(f'v_lshrrev_b32 v{hB}, 2, v0'); I(f'v_and_b32 v{hA0}, 3, v0'); I(f'v_lshlrev_b32 v{hA0}, 4, v{hA0}')
        I(f'v_mul_u32_u24 v{hG1}, 3072, v{hB}'); I(f'v_add_u32 v{hG1}, v{hG1}, v{hA0}')
        I(f's_mul_i32 s{sK}, s{sH}, {16*3072}'); I(f's_lshl_b32 s{sA}, s{sJ}, 6'); I(f's_add_u32 s{sK}, s{sK}, s{sA}')
        I(f's_add_u32 s{sU}, s{sK}, 1024')
        p.wait_hard(lg=0)
        I(f's_mov_b32 s{hPH}, s{hW1+2}'); I(f's_mov_b32 s{hPH+1}, s{hW1+3}')
        I(f's_mov_b32 s{hWU}, s{hWG+2}'); I(f's_mov_b32 s{hWU+1}, s{hWG+3}')
        for srd, nb in ((hW1, 512 * 1536 * 2), (hPH, 32 * 512), (hWO, 512 * 512 * 2), (hWG, 512 * F * 2), (hWU, 512 * F * 2), (hWD, F * 512 * 2)):
            I(f's_mov_b32 s{srd+2}, {nb:#x}'); I(f's_mov_b32 s{srd+3}, 0x20000')
        self.ts(0)
        I(f's_cmp_lg_u32 s{sW}, 7'); p.branch('s_cbranch_scc1 L_h0')
        for i in range(4): I(f'v_mov_b32 v{hD+i}, 0')
        I(f's_lshl_b32 s{sA}, s{sRB}, 13'); I(f's_mul_i32 s{sB}, s{sJ}, 384'); I(f's_add_u32 s{sA}, s{sA}, s{sB}')
        I(f's_add_u32 s{sA}, s{sA}, {FLG:#x}')
        I(f's_lshl_b32 s{sB}, s{sJ}, 13'); I(f's_add_u32 s{sB}, s{sB}, {FLG+F_AR:#x}')
        I('s_mov_b32 exec_hi, 0'); I('s_mov_b32 exec_lo, 0xffffff')
        I(f'buffer_store_dwordx4 {vr(hD,4)}, v{vL0}, {WS}, s{sA} offen sc1')
        I('s_mov_b32 exec_lo, -1')
        I(f's_cmp_lg_u32 s{sRB}, 0'); p.branch('s_cbranch_scc1 L_h00')
        I(f'buffer_store_dwordx4 {vr(hD,4)}, v{vL0}, {WS}, s{sB} offen sc1')
        p.label('L_h00')
        I('s_mov_b64 exec, -1')
        I(f's_lshl_b32 s{sA}, s{sJ}, 10'); I(f's_mov_b32 m0, {L_PHIR}')
        I(f'buffer_load_dwordx4 v{vL0}, {sq(hPH)}, s{sA} offen lds')
        p.label('L_h0')
        p.vm = []
        self.ldstrip(hW1, hG1, 3072, sU, RW1)
        I(f's_add_u32 s{sU}, s{sK}, 2048')
        self.ldstrip(hW1, hG1, 3072, sU, RW1 + 32)
        I(f's_cmp_lg_u32 s{sW}, 7'); p.branch('s_cbranch_scc1 L_h1')
        I(f's_getreg_b32 s{sA}, hwreg(HW_REG_XCC_ID)')
        I(f's_and_b32 s{sA}, s{sA}, 15')
        I(f's_mul_i32 s{sB}, s{sA}, s{sA}'); I(f's_lshl_b32 s{sB}, s{sB}, 8'); I(f's_add_u32 s{sA}, s{sA}, s{sB}')
        I(f's_lshl_b32 s{sA}, s{sA}, 8'); I(f's_add_u32 s{sA}, s{sA}, 1')
        I(f's_lshl_b32 s{sXC}, s{sA}, 4')
        I(f'v_mov_b32 v{hD}, s{sA}'); I(f's_lshl_b32 s{sB}, s{sRB}, 4'); I(f'v_mov_b32 v{hD+1}, s{sB}')
        p._emit('s_waitcnt vmcnt(17)')
        I('s_mov_b64 exec, 1')
        snap = p.snapshot()
        I(f'global_atomic_add v{hD+1}, v{hD}, s[{sDB}:{sDB+1}] sc1')
        p.restore(snap)
        I('s_mov_b64 exec, -1')
        p.label('L_h1')
        self.ldstrip(hW1, hG1, 3072, sK, RW1 + 64)
        I(f'v_and_b32 v{hA1}, 7, v{hB}'); I(f'v_lshlrev_b32 v{hG2}, 10, v{hA1}')
        I(f'v_lshrrev_b32 v{hA1}, 5, v0'); I(f'v_lshl_add_u32 v{hG2}, v{hA1}, 6, v{hG2}'); I(f'v_add_u32 v{hG2}, v{hG2}, v{hA0}')
        I(f's_lshl_b32 s{sW2}, s{sH}, 13'); I(f's_lshl_b32 s{sA}, s{sCC}, 7'); I(f's_add_u32 s{sW2}, s{sW2}, s{sA}')
        for q in range(16):
            s = sW2
            if q:
                s = sA + (q & 1); I(f's_add_u32 s{s}, s{sW2}, {q*32768}')
            I(f'buffer_load_dwordx4 {vr(RW2+4*q,4)}, v{hG2}, {sq(hWO)}, s{s} offen')
        I(f'v_mul_u32_u24 v{hG3}, 2752, v{hB}'); I(f'v_add_u32 v{hG3}, v{hG3}, v{hA0}')
        I(f's_mul_i32 s{sK}, s{sH}, {16*2752}'); I(f's_lshl_b32 s{sA}, s{sJ}, 6'); I(f's_add_u32 s{sK}, s{sK}, s{sA}')
        I(f's_add_u32 s{sU}, s{sK}, 1024')
        self.ldstrip(hWG, hG3, 2752, sU, RW3)
        self.ldstrip(hWU, hG3, 2752, sU, RW3 + 32)
        I(f's_add_u32 s{sU}, s{sK}, 2048')
        I(f'v_add_u32 v{hL0}, s{sH1}, v{vL0}'); I(f'v_add_u32 v{hL1}, 0x10000, v{hL0}')
        self.trbase(hT0, 0, 'std', hA0, hA1)
        I(f's_mov_b32 s{sONES}, 0x3f803f80')
        I(f's_and_b32 s{sA}, s{sRB}, 1'); I(f's_lshl_b32 s{sA}, s{sA}, 1'); I(f's_lshr_b32 s{sB}, s{sJ}, 3'); I(f's_add_u32 s{sA}, s{sA}, s{sB}')
        I(f's_lshl_b32 s{sA}, s{sA}, 2'); I(f's_add_u32 s{sA}, s{sA}, s{sH}'); I(f's_mul_i32 s{sA}, s{sA}, 74'); I(f's_add_u32 s{sA}, s{sA}, 192')
        I(f's_lshl_b32 s{sPF}, s{sA}, 10'); I(f's_lshl_b32 s{sA}, s{sCC}, 7'); I(f's_add_u32 s{sPF}, s{sPF}, s{sA}')
        bar()
        self.wr(RW1, 16, 0)
        hbar()
        self.ts(1)
        self.wr(RW1 + 64, 8, 16)
        self.colsum(4, 2, 0, L_EXT1)
        I(f's_cmp_lg_u32 s{sW}, 7'); p.branch('s_cbranch_scc1 L_h2')
        I(f'v_bfe_u32 v{hA0}, v0, 1, 1'); I(f'v_bfe_u32 v{hA1}, v0, 4, 1'); I(f'v_lshl_add_u32 v{hA0}, v{hA1}, 1, v{hA0}')
        I(f'v_bfe_u32 v{hA1}, v0, 2, 2'); I(f'v_lshl_add_u32 v{hA0}, v{hA1}, 2, v{hA0}')
        I(f'v_lshrrev_b32 v{hA1}, 5, v0'); I(f'v_lshl_add_u32 v{hA0}, v{hA1}, 5, v{hA0}')
        I(f'v_lshlrev_b32 v{hA0}, 3, v{hA0}'); I(f'v_add_u32 v{hA0}, {L_PHIR}, v{hA0}')
        for hh in range(2):
            for t in range(2): I(f'ds_read_b64_tr_b16 {vr(hR+4*hh+2*t,2)}, v{hA0} offset:{hh*512+t*128}')
        I(f'v_bfe_u32 v{hA1}, v0, 2, 1'); I(f'v_mul_u32_u24 v{hA1}, 0x8000, v{hA1}'); I(f'v_lshl_or_b32 v{hA1}, v{hA1}, 16, v{hA1}')
        I(f'v_lshlrev_b32 v{hB}, 4, v0'); I(f'v_add_u32 v{hB}, {L_APHI}, v{hB}')
        for q in range(8): I(f'v_xor_b32 v{hR+q}, v{hR+q}, v{hA1}')
        I(f'ds_write_b128 v{hB}, {vr(hR,4)}'); I(f'ds_write_b128 v{hB}, {vr(hR+4,4)} offset:1024')
        p.wait(lg=0)
        p.label('L_h2')
        hbar()
        p.label('L_hbody')
        p.vm = []
        bar()
        self.ts(2)
        self.ldstrip(hWG, hG3, 2752, sK, None, 0)
        self.ldstrip(hWU, hG3, 2752, sK, None, 8)
        def shake():
            I(f's_cmp_lg_u32 s{sW}, 7'); p.branch('s_cbranch_scc1 L_h3')
            I(f's_mov_b32 s{sITER}, 0x4000'); I(f's_lshl_b32 s{sM}, s{sRB}, 4')
            p.label('L_hs')
            I(f's_load_dword s{sA}, s[{sDB}:{sDB+1}], s{sM} glc'); I(f's_load_dword s{sB}, s[{sDB}:{sDB+1}], 0 glc')
            I(f's_sub_u32 s{sITER}, s{sITER}, 1'); p.branch('s_cbranch_scc1 L_hs2')
            p.wait_hard(lg=0)
            I(f's_and_b32 s{sB}, s{sB}, s{sA}'); I(f's_bitcmp1_b32 s{sB}, 4')
            p.branch('s_cbranch_scc0 L_hs')
            p.label('L_hs2')
            p.wait_hard(lg=0)
            I(f's_cmp_eq_u32 s{sA}, s{sXC}'); I(f's_cselect_b32 s{sA}, 1, 0')
            I(f'v_mov_b32 v{hA0}, s{sA}'); I(f'v_mov_b32 v{hA1}, {L_MODE}')
            I(f'ds_write_b32 v{hA1}, v{hA0}')
            p.wait(lg=0)
            p.label('L_h3')
        self.l0(shake)
        bar()
        self.ts(3)
        self.l0(lambda: self.colsum(6, 1, 16, L_EXT1 + 512))
        bar()
        p._emit('s_waitcnt vmcnt(32)')
        self.wr(RW2, 16, 16)
        bar()
        hbar()
        self.ts(4)
        p.wait_hard(vm=0); bar()
        self.ts(5)
        self.wr(RW3, 16, 16)
        self.l0(lambda: self.colsum(4, 2, 0, L_EXT3))
        hbar()
        self.ts(6)
        def pf():
            I(f'v_lshlrev_b32 v{hB}, 10, v0')
            I(f's_add_u32 s{sA}, s{sPF}, {10*1024}')
            I(f'buffer_load_dword v{hD}, v{hB}, {sq(hWD)}, s{sPF} offen')
            I(f'buffer_load_dword v{hD+1}, v{hB}, {sq(hWD)}, s{sA} offen')
        self.w4dma(0, 6)
        if PFAT == 0: pf()
        bar()
        self.ts(7)
        I(f's_cmp_eq_u32 s{sHEAVY}, 0'); p.branch('s_cbranch_scc1 L_hlight')
        self.ldstrip(hWG, hG3, 2752, sU, None, 0)
        self.ldstrip(hWU, hG3, 2752, sU, None, 8)
        p.label('L_hlight')
        if PFAT == 1: pf()
        self.l0(lambda: self.colsum(6, 2, 16, L_EXT3 + 512))
        bar()
        p.wait_hard(vm=2 if PFAT == 1 else 0); bar()
        self.ts(8)
        self.w4dma(6, 22)
        def cs2():
            E = self.lab('nh')
            I(f's_cmp_eq_u32 s{sHEAVY}, 0'); p.branch(f's_cbranch_scc1 {E}')
            self.colsum(4, 2, 0, L_EXT3 + 1024)
            p.label(E)
        self.l0(cs2)
        bar()
        self.w4dma(22, 30)
        p.wait_hard(vm=8); bar()
        self.ts(9)
        self.w4dma(30, 38)
        p.wait_hard(vm=0); bar()
        self.w4dma(38, 43)
        p.wait_hard(vm=0); bar()
        self.ts(10)
        bar()
        self.ts(11)
        I(f's_cmp_eq_u32 s{sLAYER}, 1'); p.branch('s_cbranch_scc1 L_hend')
        self.wr(RW1, 16, 0)
        self.ts_save()
        hbar()
        self.ts(1)
        self.wr(RW1 + 64, 8, 16)
        hbar()
        I(f's_mov_b32 s{sLAYER}, 1')
        p.branch('s_branch L_hbody')
        p.label('L_hend')
        if TS:
            I(f'v_lshlrev_b32 v{hA0}, 4, v0')
            self.ts_flush(hA1, hB, hA0)

def desc(name, vg=256):
    return f""".p2align 6
.amdhsa_kernel {name}
  .amdhsa_next_free_vgpr {vg}
  .amdhsa_next_free_sgpr 102
  .amdhsa_accum_offset {vg}
  .amdhsa_group_segment_fixed_size 0
  .amdhsa_kernarg_size 88
  .amdhsa_user_sgpr_count 2
  .amdhsa_user_sgpr_kernarg_segment_ptr 1
  .amdhsa_system_sgpr_workgroup_id_x 1
.end_amdhsa_kernel
"""
if __name__ == '__main__':
    out = [a for a in sys.argv[1:] if not a.startswith('--')][0]
    ref = open(f'cdna_kernels/{NAME}.s.ref').read().split('\n')
    hdr = [l for l in ref if l.startswith(';') and '@launch' not in l]
    k = K(); k.main()
    txt = '\n'.join(hdr) + '\n'
    txt += f'; @launch grid=(256,1,1) block=(512,1,1) lds={LDS_BYTES}\n'
    txt += '.amdgcn_target "amdgcn-amd-amdhsa--gfx950"\n.text\n' + k.p.text()
    txt += '.section .rodata,"a"\n' + desc(NAME + '_kernel')
    open(out, 'w').write(txt)
    print(k.p.stats)
```

```python
import sys, math, os
from asm import Prog
from layout import *

NAME = 'interleave_layers__linear_kernel_hedgehog__geglu_ffn__prompt'
TS = '--ts' in sys.argv
def f32(x):
    import struct
    return '0x%08x' % struct.unpack('<I', struct.pack('<f', x))[0]
def vr(a, n): return f'v[{a}:{a+n-1}]' if n > 1 else f'v{a}'
def env(n, d): return int(os.environ.get(n, d))

WS = 's[4:7]'; OUT = 's[8:11]'; XS = 's[96:99]'
sRB, sJ, sW, sHEAVY, sLAYER = 12, 13, 14, 15, 16
sRT, sRT2, sCT = 17, 18, 19
(sKVR, sKVW, sOFW, sOFR, sX1W, sST1W, sX1R, sST1R, sHFW, sHFR) = range(20, 30)
LAY_A = list(range(20, 30))
(sFOCW, sFOCR, sFX1W, sFX1R, sFHCW, sFHCR) = range(30, 36)
LAY_F = list(range(30, 36))
sFAR, sFARW = 36, 37
sXNW, sSTNW, sFXW, sFXR = 38, 39, 40, 41
sHALF = 42
sT0, sT1, sT2, sT3, sT4, sT5 = 44, 45, 46, 47, 48, 49
sONES, sSELLO, sSELHI, sMASKHI = 51, 52, 53, 54
sPOLL, sITER = 55, 56
sTSA = 58
sTS = 60
NTS = 18
vHS = 0
vL0, vT0, vT1, vL8, vL2, vAR, vKVA, vPH, vEXT, vOWN, vOTH, vX0, vX1, vFO, vP = range(1, 16)
XB, ACC, AF, RES, BEXT, CON, TMP = 16, 144, 208, 232, 240, 244, 248
vONE = CON + 3
NAF = 6
NUP = env('NUP', 14)
NUP2 = env('NUP2', 16)
SLEEP = env('SLEEP', 1)
FORCESLOW = env('FORCESLOW', 0)
BE = env('BE', 56); BM = env('BM', 44); BU1 = env('BU1', 48); B7B = env('B7B', 38)
FP = env('FP', 3)
PFAT = env('PFAT', 1)
PAIRW = env('PAIRW', 1)
hW1, hWO, hWG, hWU, hWD, hPH = 20, 24, 28, 32, 36, 40
sH, sCC, sA, sB, sM = 44, 45, 46, 47, 48
sDB = 96
sXC = 52
hL0, hL1, hG1, hG3, hG2, hT0, hB, hA0, hA1 = 1, 2, 3, 4, 5, 6, 7, 8, 9
hR = 12
hD = 28
RW1, RW2, RW3 = 32, 128, 192
def sq(a): return f's[{a}:{a+3}]'

class K:
    def __init__(self):
        self.p = Prog(); self.uid = 0; self.ool = []; self.sc = ''; self.x = ''
    def I(self, t): return self.p.I(t)
    def lab(self, base):
        self.uid += 1; return f'L_{base}_{self.uid}'
    def ts(self, idx):
        if not TS: return
        self.p.wait(lg=0)
        self.I(f's_memrealtime s[{sTSA}:{sTSA+1}]'); self.p.wait_hard(lg=0)
        self.I(f's_mov_b32 s{sTS+idx}, s{sTSA}')
    def ts_save(self):
        if not TS: return
        for i in range(NTS): self.I(f's_mov_b32 s{sTS+NTS+i}, s{sTS+i}')
    def ts_flush(self, va, vb, vl):
        if not TS: return
        p = self.p
        self.I(f'v_mov_b32 v{va}, 0')
        for i in range(2 * NTS):
            self.I(f'v_writelane_b32 v{va}, s{sTS+(i+NTS)%(2*NTS)}, {i}')
        self.I(f's_lshl_b32 s{sT0}, s2, 3'); self.I(f's_add_u32 s{sT0}, s{sT0}, s{sW}')
        self.I(f's_lshl_b32 s{sT0}, s{sT0}, 8'); self.I(f's_add_u32 s{sT0}, s{sT0}, {TSB}')
        self.I(f'v_lshrrev_b32 v{vb}, 2, v{vl}')
        self.I(f'buffer_store_dword v{va}, v{vb}, {WS}, s{sT0} offen')
        p.wait(vm=0)
    def barrier(self):
        self.p.wait(lg=0)
        self.I('s_barrier')
    def bar(self): self.I('s_barrier')
    def rdtr(self, dst, base, off):
        self.I(f'ds_read_b64_tr_b16 {vr(dst,2)}, v{base} offset:{off}')
        self.I(f'ds_read_b64_tr_b16 {vr(dst+2,2)}, v{base} offset:{off+256}')
    def rdstrip(self, dst, strip, ks):
        a = strip * G + (32 * (ks >> 1) + 8 * (ks & 1)) * 64
        self.rdtr(dst, vT0 + a // 65536, a % 65536)
    def poll(self, sflag, off=0, vo=vFO):
        p = self.p
        L = self.lab('poll'); Dn = self.lab('pdone')
        self.I(f's_mov_b32 s{sITER}, 0x8000')
        p.label(L)
        self.I(f'buffer_load_dword v{vP}, v{vo}, {WS}, s{sflag} offen offset:{off} sc1')
        self.I(f's_sub_u32 s{sITER}, s{sITER}, 1')
        p.wait(vm=0)
        self.I(f'v_cmp_eq_u32 vcc, 0, v{vP}')
        p.xbranch(f's_cbranch_vccz {Dn}')
        p.xbranch(f's_cbranch_scc0 {L}')
        p.xlabel(Dn)
    def poll_issue(self, sflag, off):
        self.I(f'buffer_load_dword v{vP}, v{vFO}, {WS}, s{sflag} offen offset:{off} sc1')
    def poll_check(self, sflag, off):
        p = self.p
        L = self.lab('slow'); Bk = self.lab('back')
        self.I(f'v_cmp_eq_u32 vcc, 0, v{vP}')
        p.xbranch(f's_cbranch_vccnz {L}')
        p.xlabel(Bk)
        self.ool.append(f"""{L}:
  s_mov_b32 s{sITER}, 0x8000
{L}b:
  buffer_load_dword v{vP}, v{vFO}, {WS}, s{sflag} offen offset:{off} sc1
  s_sub_u32 s{sITER}, s{sITER}, 1
  s_waitcnt vmcnt(0)
  v_cmp_eq_u32 vcc, 0, v{vP}
  s_cbranch_vccz {Bk}
  s_cbranch_scc0 {L}b
  s_branch {Bk}""")
    def signal(self, sflag, offs=(0,), ids=None):
        p = self.p
        if ids is None: p.wait(vm=0)
        else:
            for i in ids: p.wait_vm_id(i)
        self.I('s_mov_b64 exec, 1')
        for o in offs: self.I(f'buffer_store_dword v{vONE}, off, {WS}, s{sflag} offset:{o}{self.sc}')
        self.I('s_mov_b64 exec, -1')
    def loadfrags(self, sbase, idxs):
        cur = None
        for reg, idx in idxs:
            q = idx // 4
            if q != cur:
                cur = q
                if q == 0: s = sbase
                else:
                    s = sT0 + (q & 1)
                    self.I(f's_add_u32 s{s}, s{sbase}, {q*4096}')
            self.I(f'buffer_load_dwordx4 {vr(reg,4)}, v{vL0}, {WS}, s{s} offen offset:{(idx%4)*1024} sc1')
    def later(self, sbase, n, nup, at=None):
        at = {} if at is None else at
        for k in range(nup, n):
            at.setdefault(2 * (k - nup) + 2, []).append(lambda k=k: self.loadfrags(sbase, [(XB + 4 * (k % 32), k)]))
        return at
    def loadstats(self, dst, sbase):
        for i in range(8):
            self.I(f'buffer_load_dwordx2 {vr(dst+2*i,2)}, v{vL8}, {WS}, s{sbase} offen offset:{i*512} sc1')
    def stats_red(self, st):
        o = []
        for i in range(1, 8):
            o.append(f'v_add_f32 v{st}, v{st}, v{st+2*i}')
            o.append(f'v_add_f32 v{st+1}, v{st+1}, v{st+2*i+1}')
        return o
    def stats_fin(self, st, mode):
        o = []
        o.append(f'v_mov_b32 v{st+2}, v{st}')
        o.append(f'v_mov_b32 v{st+3}, v{st+1}')
        o.append(f'v_permlane32_swap_b32 v{st+2}, v{st}')
        o.append(f'v_permlane32_swap_b32 v{st+3}, v{st+1}')
        o.append(f'v_add_f32 v{st}, v{st}, v{st+2}')
        o.append(f'v_add_f32 v{st+1}, v{st+1}, v{st+3}')
        o.append(f'v_mul_f32 v{st}, {f32(-1/512)}, v{st}')
        o.append(f'v_mul_f32 v{st+1}, {f32(1/512)}, v{st+1}')
        o.append(f'v_fma_f32 v{st+1}, -v{st}, v{st}, v{st+1}')
        o.append(f'v_cvt_pk_bf16_f32 v{BEXT}, v{st}, v{st}')
        o.append(f'v_max_f32 v{st+1}, 0, v{st+1}')
        o.append(f'v_add_f32 v{st+1}, {f32(1e-5)}, v{st+1}')
        o.append(f'v_and_b32 v{st+2}, s{sMASKHI}, v{BEXT}')
        o.append(f'v_rsq_f32 v{st+3}, v{st+1}')
        o.append(f'v_sub_f32 v{st+2}, v{st}, v{st+2}')
        o.append(f'v_cvt_pk_bf16_f32 v{BEXT+1}, v{st+2}, v{st+2}')
        o.append(f'v_cndmask_b32 v{BEXT}, v{BEXT}, 0, s[{sHALF}:{sHALF+1}]')
        o.append(f'v_cndmask_b32 v{BEXT+1}, v{BEXT+1}, 0, s[{sHALF}:{sHALF+1}]')
        if mode == 1:
            o.append(f'v_mul_f32 v{CON}, {f32(math.log2(math.e))}, v{st+3}')
            o.append(f'v_mov_b32 v{CON+2}, v{st+3}')
        else:
            c0 = -2 * math.log2(math.e) * math.sqrt(2 / math.pi)
            o.append(f'v_mul_f32 v{CON}, {f32(c0)}, v{st+3}')
            o.append(f'v_mul_f32 v{st+2}, v{st+3}, v{st+3}')
            o.append(f'v_mul_f32 v{st+2}, {f32(0.044715)}, v{st+2}')
            o.append(f'v_mul_f32 v{CON+1}, v{CON}, v{st+2}')
            o.append(f'v_mov_b32 v{CON+2}, v{st+1}')
        return o
    def kvaddr_ops(self):
        l, r_, c_, g_, t0, t1 = TMP, TMP + 1, TMP + 2, TMP + 3, TMP + 4, TMP + 5
        o = [f'v_lshrrev_b32 v{l}, 4, v{vL0}',
             f'v_bfe_u32 v{r_}, v{l}, 2, 2', f'v_and_b32 v{c_}, 3, v{l}', f'v_bfe_u32 v{g_}, v{l}, 4, 1',
             f'v_lshrrev_b32 v{t0}, 5, v{l}',
             f'v_lshl_add_u32 v{t0}, v{t0}, 3, v{r_}', f'v_lshlrev_b32 v{t0}, 6, v{t0}',
             f'v_lshrrev_b32 v{t1}, 1, v{c_}', f'v_lshl_add_u32 v{t0}, v{t1}, 3, v{t0}',
             f's_lshl_b32 s{sT4}, s{sW}, 13', f's_add_u32 s{sT4}, s{sT4}, {L_SCRT}',
             f'v_add_u32 v{t0}, s{sT4}, v{t0}',
             f'v_lshrrev_b32 v{r_}, 1, v{r_}', f'v_and_b32 v{t1}, 1, v{c_}',
             f'v_lshl_add_u32 v{vOWN}, v{t1}, 1, v{g_}', f'v_lshl_add_u32 v{vX0}, v{g_}, 1, v{t1}',
             f'v_xor_b32 v{vOWN}, v{vOWN}, v{r_}', f'v_xor_b32 v{vX0}, v{vX0}, v{r_}',
             f'v_lshl_add_u32 v{vOWN}, v{vOWN}, 4, v{t0}', f'v_lshl_add_u32 v{vX0}, v{vX0}, 4, v{t0}',
             f'v_xor_b32 v{vOTH}, 32, v{vOWN}', f'v_xor_b32 v{vX1}, 32, v{vX0}']
        return o
    def gemm(self, steps, fill=None, fill_per=4, at=None, lead=NAF-1, pair=True):
        p = self.p
        fill = list(fill or [])
        n = len(steps); issued = 0; at = at or {}
        for i in range(n):
            for f in at.get(i, []): f()
            while issued < n and issued <= i + lead:
                for f in at.get(('rd', issued), []): f()
                steps[issued][1](AF + 4 * (issued % NAF)); issued += 1
            acc, _, b, first = steps[i]
            if pair and PAIRW and i % 2 == 0 and i + 1 < n:
                p.touch([f'v{AF+4*((i+1)%NAF)+q}' for q in range(4)])
            c = '0' if first else vr(acc, 16)
            self.I(f'v_mfma_f32_32x32x16_bf16 {vr(acc,16)}, {vr(AF+4*(i%NAF),4)}, {vr(b,4)}, {c}')
            budget = fill_per
            while fill and budget > 0:
                t = fill.pop(0)
                if callable(t): t(); budget -= 1; continue
                self.I(t)
                budget -= 2 if t.split()[0] in ('v_exp_f32', 'v_rcp_f32', 'v_rsq_f32') else 1
        self.run(fill)
    def run(self, l):
        for t in l:
            if callable(t): t()
            else: self.I(t)
    def softmax2(self, P0, P1):
        I = self.I
        Ps = (P0, P1); m = (TMP, TMP + 2); s = (TMP + 4, TMP + 6)
        for a in range(2): I(f'v_max3_f32 v{m[a]}, v{Ps[a]}, v{Ps[a]+1}, v{Ps[a]+2}')
        for i in range(3, 15, 2):
            for a in range(2): I(f'v_max3_f32 v{m[a]}, v{m[a]}, v{Ps[a]+i}, v{Ps[a]+i+1}')
        for a in range(2): I(f'v_max_f32 v{m[a]}, v{m[a]}, v{Ps[a]+15}')
        for a in range(2): I(f'v_mul_f32_e64 v{m[a]}, -v{CON}, v{m[a]}')
        for i in range(0, 16, 2):
            for a in range(2):
                I(f'v_pk_fma_f32 {vr(Ps[a]+i,2)}, {vr(Ps[a]+i,2)}, {vr(CON,2)}, {vr(m[a],2)} op_sel_hi:[1,0,0]')
        for i in range(16):
            for a in range(2): I(f'v_exp_f32 v{Ps[a]+i}, v{Ps[a]+i}')
        for a in range(2): I(f'v_pk_add_f32 {vr(s[a],2)}, {vr(Ps[a],2)}, {vr(Ps[a]+2,2)}')
        for i in range(4, 16, 2):
            for a in range(2): I(f'v_pk_add_f32 {vr(s[a],2)}, {vr(s[a],2)}, {vr(Ps[a]+i,2)}')
        for a in range(2): I(f'v_add_f32 v{s[a]}, v{s[a]}, v{s[a]+1}')
        for a in range(2): I(f'v_rcp_f32 v{s[a]}, v{s[a]}')
        for i in range(0, 16, 2):
            for a in range(2):
                I(f'v_pk_mul_f32 {vr(Ps[a]+i,2)}, {vr(Ps[a]+i,2)}, {vr(s[a],2)} op_sel_hi:[1,0]')
        for i in range(8):
            for a in range(2): I(f'v_cvt_pk_bf16_f32 v{Ps[a]+i}, v{Ps[a]+2*i}, v{Ps[a]+2*i+1}')
    def rdaphi(self, A):
        self.I(f'ds_read_b128 {vr(A,4)}, v{vL2} offset:{L_APHI-131072}')
        self.I(f'ds_read_b128 {vr(A+4,4)}, v{vL2} offset:{L_APHI-131072+1024}')
    def feat(self, acc, P0, P1, A):
        I = self.I
        for i in range(8): I(f'v_cvt_pk_bf16_f32 v{acc+i}, v{acc+2*i}, v{acc+2*i+1}')
        I(f'v_mfma_f32_32x32x16_bf16 {vr(P0,16)}, {vr(A,4)}, {vr(acc,4)}, 0')
        I(f'v_mfma_f32_32x32x16_bf16 {vr(P1,16)}, {vr(A+4,4)}, {vr(acc+4,4)}, 0')
    def gelu_ops(self, Gr, Ur, packed):
        o = []
        if not packed:
            for i in range(0, 16, 2):
                t = [TMP + (i % 8), TMP + (i % 8) + 1]
                for a in range(2): o.append(f'v_mul_f32 v{t[a]}, v{Gr+i+a}, v{Gr+i+a}')
                for a in range(2): o.append(f'v_fma_f32 v{t[a]}, v{t[a]}, v{CON+1}, v{CON}')
                for a in range(2): o.append(f'v_mul_f32 v{t[a]}, v{t[a]}, v{Gr+i+a}')
                for a in range(2): o.append(f'v_exp_f32 v{t[a]}, v{t[a]}')
                for a in range(2): o.append(f'v_mul_f32 v{Ur+i+a}, v{Ur+i+a}, v{Gr+i+a}')
                for a in range(2): o.append(f'v_fma_f32 v{t[a]}, v{t[a]}, v{CON+2}, v{CON+2}')
                for a in range(2): o.append(f'v_rcp_f32 v{t[a]}, v{t[a]}')
                if i: o.append(f'v_cvt_pk_bf16_f32 v{Gr+i//2-1}, v{Ur+i-2}, v{Ur+i-1}')
                else: o.append('v_nop')
                for a in range(2): o.append(f'v_mul_f32 v{Ur+i+a}, v{Ur+i+a}, v{t[a]}')
            o.append(f'v_cvt_pk_bf16_f32 v{Gr+7}, v{Ur+14}, v{Ur+15}')
        else:
            for i0 in range(0, 16, 8):
                idx = range(i0, i0 + 8, 2)
                T = lambda i: vr(TMP + (i % 8), 2)
                for i in idx: o.append(f'v_pk_mul_f32 {T(i)}, {vr(Gr+i,2)}, {vr(Gr+i,2)}')
                for i in idx: o.append(f'v_pk_fma_f32 {T(i)}, {T(i)}, {vr(CON,2)}, {vr(CON,2)} op_sel:[0,1,0] op_sel_hi:[1,1,0]')
                for i in idx: o.append(f'v_pk_mul_f32 {T(i)}, {T(i)}, {vr(Gr+i,2)}')
                for i in range(8): o.append(f'v_exp_f32 v{TMP+i}, v{TMP+i}')
                for i in idx: o.append(f'v_pk_mul_f32 {vr(Ur+i,2)}, {vr(Ur+i,2)}, {vr(Gr+i,2)}')
                for i in idx: o.append(f'v_pk_fma_f32 {T(i)}, {T(i)}, {vr(CON+2,2)}, {vr(CON+2,2)} op_sel_hi:[1,0,0]')
                for i in range(8): o.append(f'v_rcp_f32 v{TMP+i}, v{TMP+i}')
                for i in idx: o.append(f'v_pk_mul_f32 {vr(Ur+i,2)}, {vr(Ur+i,2)}, {T(i)}')
                for i in idx: o.append(f'v_cvt_pk_bf16_f32 v{Gr+i//2}, v{Ur+i}, v{Ur+i+1}')
        return o
    def res_init(self, acc):
        for i in range(8):
            self.I(f'v_lshlrev_b32 v{acc+2*i}, 16, v{RES+i}')
            self.I(f'v_and_b32 v{acc+2*i+1}, s{sMASKHI}, v{RES+i}')
    def setown(self, base, khmul):
        I = self.I
        I(f's_lshr_b32 s{sT2}, s{sW}, 1')
        I(f's_mul_i32 s{sT3}, s{sT2}, {khmul+512}'); I(f's_add_u32 s{sT3}, s{sT3}, {base}')
        I(f's_xor_b32 s{sT4}, s{sT3}, 512')
        I(f'v_add_u32 v{vOWN}, s{sT3}, v{vHS}'); I(f'v_add_u32 v{vOTH}, s{sT4}, v{vHS}')
    def setex(self, exbase):
        I = self.I
        I(f's_lshl_b32 s{sT3}, s{sW}, 12'); I(f's_xor_b32 s{sT4}, s{sT3}, 8192')
        I(f's_add_u32 s{sT3}, s{sT3}, {exbase}'); I(f's_add_u32 s{sT4}, s{sT4}, {exbase}')
        I(f'v_add_u32 v{vX0}, s{sT3}, v{vL0}'); I(f'v_add_u32 v{vX1}, s{sT4}, v{vL0}')
    def exchange(self, own, oth, tmp):
        I = self.I
        for q in range(4):
            I(f'ds_write_b128 v{vX0}, {vr(oth+4*q,4)} offset:{q*1024}')
        self.barrier()
        for q in range(4):
            I(f'ds_read_b128 {vr(tmp+4*q,4)}, v{vX1} offset:{q*1024}')
        for q in range(4):
            for i in range(4 * q, 4 * q + 4, 2):
                I(f'v_pk_add_f32 {vr(own+i,2)}, {vr(own+i,2)}, {vr(tmp+i,2)}')
            for i in range(2 * q, 2 * q + 2):
                I(f'v_cvt_pk_bf16_f32 v{RES+i}, v{own+2*i}, v{own+2*i+1}')
    def xstore(self, sfr, sst):
        I = self.I
        I(f'buffer_store_dwordx4 {vr(RES,4)}, v{vL0}, {WS}, s{sfr} offen{self.sc}')
        I(f'buffer_store_dwordx4 {vr(RES+4,4)}, v{vL0}, {WS}, s{sfr} offen offset:1024{self.sc}')
        a = TMP
        for i in range(4): I(f'v_mov_b32 v{a+i}, 0')
        for i in range(8):
            I(f'v_dot2c_f32_bf16 v{a+2*(i&1)}, s{sONES}, v{RES+i}')
            I(f'v_dot2c_f32_bf16 v{a+1+2*(i&1)}, v{RES+i}, v{RES+i}')
        I(f'v_pk_add_f32 {vr(a,2)}, {vr(a,2)}, {vr(a+2,2)}')
        I(f'v_mov_b32 v{a+2}, v{a}'); I(f'v_mov_b32 v{a+3}, v{a+1}')
        I(f'v_permlane32_swap_b32 v{a+2}, v{a}'); I(f'v_permlane32_swap_b32 v{a+3}, v{a+1}')
        I(f'v_pk_add_f32 {vr(a,2)}, {vr(a,2)}, {vr(a+2,2)}')
        I('s_mov_b32 exec_hi, 0')
        I(f'buffer_store_dwordx2 {vr(a,2)}, v{vL8}, {WS}, s{sst} offen{self.sc}')
        I('s_mov_b32 exec_hi, -1')

    def main(self):
        p = self.p; I = self.I
        KN = NAME + '_kernel'
        p.raw(f'.globl {KN}\n.p2align 8\n.type {KN},@function\n{KN}:')
        I('s_cmp_ge_u32 s2, 256'); p.branch('s_cbranch_scc1 L_end')
        I('s_load_dwordx2 s[4:5], s[0:1], 80')
        I(f'v_readfirstlane_b32 s{sW}, v0')
        I('v_and_b32 v0, 63, v0')
        I(f's_mov_b32 s6, {WS_BYTES:#x}'); I('s_mov_b32 s7, 0x20000')
        I(f's_lshr_b32 s{sW}, s{sW}, 6')
        I(f's_and_b32 s{sT0}, s2, 7'); I(f's_lshr_b32 s{sT1}, s2, 3')
        I(f's_lshr_b32 s{sJ}, s{sT1}, 1'); I(f's_and_b32 s{sT1}, s{sT1}, 1')
        I(f's_lshl_b32 s{sRB}, s{sT0}, 1'); I(f's_add_u32 s{sRB}, s{sRB}, s{sT1}')
        I(f's_mov_b32 s{sLAYER}, 0')
        I(f'v_lshlrev_b32 v{vL0}, 4, v0')
        I(f's_cmp_lt_u32 s{sJ}, 11'); I(f's_cselect_b32 s{sHEAVY}, 1, 0')
        I(f's_cmp_ge_u32 s{sW}, 4'); p.branch('s_cbranch_scc1 L_helper')
        self.cprologue()
        self.sc = ' sc1' if FORCESLOW else ''; self.x = ''
        snap = p.snapshot()
        self.body(True)
        p.restore(snap)
        self.sc = ' sc1'; self.x = 's'
        self.body(False)
        p.label('L_helper')
        self.helper()
        p.label('L_end')
        I('s_endpgm')
        for t in self.ool: p.raw(t)

    def trbase(self, dst, lane, kind, t0, t1):
        I = self.I
        I(f'v_bfe_u32 v{t0}, v{lane}, 4, 1')
        I(f'v_and_b32 v{t1}, 1, v{lane}')
        if kind == 'std':
            I(f'v_lshl_add_u32 v{t0}, v{t0}, 1, v{t1}')
        else:
            I(f'v_lshl_add_u32 v{t0}, v{t1}, 1, v{t0}')
        I(f'v_bfe_u32 v{t1}, v{lane}, 1, 1')
        I(f'v_lshl_add_u32 v{t0}, v{t0}, 1, v{t1}')
        I(f'v_bfe_u32 v{t1}, v{lane}, 2, 2')
        I(f'v_lshl_add_u32 v{t0}, v{t1}, 3, v{t0}')
        I(f'v_lshrrev_b32 v{t1}, 5, v{lane}')
        I(f'v_lshl_add_u32 v{t0}, v{t1}, 7, v{t0}')
        I(f'v_lshlrev_b32 v{dst}, 3, v{t0}')

    def cprologue(self):
        p = self.p; I = self.I
        I('s_load_dwordx2 s[96:97], s[0:1], 0')
        I('s_load_dwordx2 s[8:9], s[0:1], 64')
        I(f's_mov_b32 s98, {S*D*2:#x}'); I('s_mov_b32 s99, 0x20000')
        I(f's_mov_b32 s10, {S*D*2:#x}'); I('s_mov_b32 s11, 0x20000')
        I('s_setprio 2')
        I(f's_lshl_b32 s{sRT}, s{sRB}, 2')
        I(f's_lshr_b32 s{sT0}, s{sJ}, 3'); I(f's_lshl_b32 s{sT0}, s{sT0}, 1')
        I(f's_and_b32 s{sT1}, s{sW}, 1'); I(f's_add_u32 s{sT0}, s{sT0}, s{sT1}')
        I(f's_add_u32 s{sRT2}, s{sRT}, s{sT0}')
        I(f's_add_u32 s{sRT}, s{sRT}, s{sW}')
        I(f's_lshr_b32 s{sT2}, s{sW}, 1')
        I(f's_and_b32 s{sT3}, s{sJ}, 7'); I(f's_lshl_b32 s{sCT}, s{sT3}, 1'); I(f's_add_u32 s{sCT}, s{sCT}, s{sT2}')
        I(f's_lshl_b32 s{sT3}, s{sRT}, 15'); I(f's_lshl_b32 s{sT4}, s{sW}, 15')
        for f in range(16): I(f'v_xor_b32 v{ACC+f}, {f*16}, v{vL0}')
        p.wait_hard(lg=0)
        self.ts(0)
        for i in range(32):
            if i % 4 == 0:
                I(f's_add_u32 m0, s{sT4}, {i*1024}')
                if i: I(f's_add_u32 s{sT3}, s{sT3}, 4096')
            I(f'buffer_load_dwordx4 v{ACC+(i&15)}, {XS}, s{sT3} offen offset:{(i%4)*1024} lds')
        t0, t1, t2 = TMP, TMP + 1, TMP + 2
        I(f'v_and_b32 v{t1}, 31, v0')
        I(f'v_lshrrev_b32 v{t2}, 5, v0')
        I(f'v_lshlrev_b32 v{t0}, 10, v{t1}'); I(f'v_lshl_add_u32 v{t0}, v{t2}, 5, v{t0}')
        I(f's_lshl_b32 s{sT3}, s{sRT2}, 15'); I(f's_lshl_b32 s{sT5}, s{sCT}, 6'); I(f's_add_u32 s{sT3}, s{sT3}, s{sT5}')
        I(f'buffer_load_dwordx4 {vr(RES,4)}, v{t0}, {XS}, s{sT3} offen')
        I(f'buffer_load_dwordx4 {vr(RES+4,4)}, v{t0}, {XS}, s{sT3} offen offset:16')
        def lin(dst, base, terms):
            first = True
            for sreg, mul in terms:
                tgt = dst if first else sT5
                I(f's_mul_i32 s{tgt}, s{sreg}, {mul}')
                if not first: I(f's_add_u32 s{dst}, s{dst}, s{sT5}')
                first = False
            I(f's_add_u32 s{dst}, s{dst}, {base:#x}')
        B = LB0
        lin(sKVR, B + KVP, [(sJ, 4 * 16 * KVS), (sW, 16 * KVS)])
        lin(sKVW, B + KVP, [(sJ, 4 * 16 * KVS), (sW, 32 * KVS), (sRB, KVS)])
        lin(sOFW, B + OF, [(sRT, 32768), (sJ, 2048)])
        lin(sOFR, B + OF, [(sRT2, 32768), (sT2, 16384)])
        lin(sX1W, B + X1F, [(sRT2, 32768), (sCT, 2048)])
        lin(sST1W, B + ST1, [(sRT2, 4096), (sCT, 256)])
        lin(sX1R, B + X1F, [(sRT, 32768)]); lin(sST1R, B + ST1, [(sRT, 4096)])
        lin(sHFW, B + HF, [(sRT, 86 * 1024), (sJ, 1024)])
        lin(sHFR, B + HF, [(sRT2, 86 * 1024), (sT2, 43 * 1024)])
        lin(sXNW, B + LBS + XIN, [(sRT2, 32768), (sCT, 2048)])
        lin(sSTNW, B + LBS + STIN, [(sRT2, 4096), (sCT, 256)])
        fk = lambda kind: FLG + kind * 4 * FL
        lin(sFOCW, fk(K_OC), [(sRB, 8192), (sW, FL), (sJ, 4)])
        lin(sFOCR, fk(K_OC), [(sRB, 8192), (sT0, FL), (sT2, 32)])
        lin(sFX1W, fk(K_X1), [(sRB, 8192), (sT0, FL), (sCT, 4)])
        lin(sFX1R, fk(K_X1), [(sRB, 8192), (sW, FL)])
        lin(sFHCW, fk(K_HC), [(sRB, 8192), (sW, FL), (sJ, 4)])
        lin(sFHCR, fk(K_HC), [(sRB, 8192), (sT0, FL)])
        lin(sFXW, fk(K_XC), [(sRB, 8192), (sT0, FL), (sCT, 4)])
        lin(sFXR, fk(K_XC), [(sRB, 8192), (sW, FL)])
        lin(sFAR, FLG + F_AR, [(sJ, 8192)])
        lin(sFARW, FLG + F_AR, [(sJ, 8192), (sW, FL)])
        I(f's_mov_b32 s{sHALF}, 0'); I(f's_mov_b32 s{sHALF+1}, -1')
        I(f's_mov_b32 s{sONES}, 0x3f803f80'); I(f's_mov_b32 s{sSELLO}, 0x3f80'); I(f's_mov_b32 s{sSELHI}, 0x3f800000')
        I(f's_mov_b32 s{sMASKHI}, 0xffff0000')
        t3 = TMP + 3
        I(f'v_lshlrev_b32 v{vL8}, 3, v0'); I(f'v_add_u32 v{vL2}, 0x20000, v{vL0}')
        I(f'v_mov_b32 v{t3}, 0x80000000')
        I(f'v_mul_u32_u24 v{vAR}, 320, v{t2}')
        I(f'v_lshl_add_u32 v{vAR}, v{t1}, 4, v{vAR}')
        I(f'v_cmp_gt_u32 vcc, 20, v{t1}')
        I(f'v_cndmask_b32 v{vAR}, v{t3}, v{vAR}, vcc')
        I(f'v_min_u32 v{vKVA}, 16, v{t1}')
        I(f'v_lshl_add_u32 v{vKVA}, v{t2}, 5, v{vKVA}')
        I(f'v_lshlrev_b32 v{vKVA}, 4, v{vKVA}')
        I(f'v_add_u32 v{vKVA}, {L_KVA}, v{vKVA}')
        I(f'v_lshrrev_b32 v{vPH}, 1, v{t1}'); I(f'v_and_b32 v{vPH}, 3, v{vPH}')
        I(f'v_lshlrev_b32 v{t3}, 1, v{t2}'); I(f'v_xor_b32 v{vPH}, v{vPH}, v{t3}')
        I(f'v_lshlrev_b32 v{vPH}, 4, v{vPH}')
        I(f'v_lshl_add_u32 v{vPH}, v{t1}, 6, v{vPH}')
        I(f's_lshl_b32 s{sT3}, s{sW}, 11'); I(f's_add_u32 s{sT3}, s{sT3}, {L_SCRT}')
        I(f'v_add_u32 v{vPH}, s{sT3}, v{vPH}')
        I(f'v_lshlrev_b32 v{vEXT}, 3, v{t1}'); I(f'v_add_u32 v{vEXT}, {RESV}, v{vEXT}')
        I(f'v_mov_b32 v{BEXT+2}, 0'); I(f'v_mov_b32 v{BEXT+3}, 0'); I(f'v_mov_b32 v{vONE}, 1')
        I(f'v_and_b32 v{vFO}, 15, v0'); I(f'v_lshlrev_b32 v{vFO}, 2, v{vFO}')
        va = ACC + 16
        I(f'v_and_b32 v{va}, 15, v0'); I(f'v_xor_b32 v{va}, v{va}, v{t3}'); I(f'v_lshlrev_b32 v{va}, 4, v{va}')
        I(f'v_lshl_add_u32 v{va}, v{t1}, 10, v{va}'); I(f'v_add_u32 v{va}, s{sT4}, v{va}')
        bbs = [0, 1, 4, 5, 8, 9, 12, 13]
        for q, bb in enumerate(bbs[1:]): I(f'v_xor_b32 v{va+1+q}, {bb*16}, v{va}')
        self.trbase(vT0, 0, 'std', t0, t1)
        I(f'v_add_u32 v{vT1}, 0x10000, v{vT0}')
        self.trbase(vHS, 0, 'hs', t0, t1)
        self.run(self.kvaddr_ops())
        ST = ACC + 48
        for i in range(4): I(f'v_mov_b32 v{ST+i}, 0')
        p.wait_hard(vm=2)
        for ks in range(32):
            c = 4 * (ks >> 1) + (ks & 1)
            I(f'ds_read_b128 {vr(XB+4*ks,4)}, v{va+bbs.index(c & 15)} offset:{(c>>4)*256}')
            if ks in (14, 21, 28): p.wait(lg=8)
        self.barrier()
        for r in range(128):
            I(f'v_dot2c_f32_bf16 v{ST+2*(r&1)}, s{sONES}, v{XB+r}')
            I(f'v_dot2c_f32_bf16 v{ST+1+2*(r&1)}, v{XB+r}, v{XB+r}')
        I(f'v_add_f32 v{ST}, v{ST}, v{ST+2}'); I(f'v_add_f32 v{ST+1}, v{ST+1}, v{ST+3}')
        self.run(self.stats_fin(ST, 1))
        self.bar()
        self.ts(1)
        self.kvloop([], {})
        p.wait(vm=0)

    def kvloop(self, fill, at):
        I = self.I
        aK, aV = ACC, ACC + 16
        steps = []
        for ks in range(32):
            steps.append((aK, (lambda d, ks=ks: self.rdstrip(d, 0, ks)), XB + 4 * ks, ks == 0))
            steps.append((aV, (lambda d, ks=ks: self.rdstrip(d, 8, ks)), XB + 4 * ks, ks == 0))
        steps.append((aK, (lambda d: I(f'ds_read_b64 {vr(d,2)}, v{vEXT} offset:0')), BEXT, False))
        steps.append((aV, (lambda d: I(f'ds_read_b64 {vr(d,2)}, v{vEXT} offset:256')), BEXT, False))
        at.setdefault(BE, []).append(self.bar)
        at.setdefault(64, []).append(self.barrier)
        at.setdefault(65, []).append(lambda: self.rdaphi(AF + 8))
        self.gemm(steps, fill=fill, fill_per=2, at=at)

    def body(self, fast):
        p = self.p; I = self.I; x = self.x
        p.label('L_body' + x)
        p.lg = [(-1, [f'v{AF+8+q}' for q in range(4)]), (-2, [f'v{AF+12+q}' for q in range(4)])]
        self.ts(2)
        aK, aV = ACC, ACC + 16
        P0, P1 = ACC + 32, ACC + 48
        self.feat(aK, P0, P1, AF + 8)
        for i in range(0, 16, 2):
            I(f'v_pk_mul_f32 {vr(aV+i,2)}, {vr(aV+i,2)}, {vr(CON+2,2)} op_sel_hi:[1,0]')
        for i in range(8): I(f'v_cvt_pk_bf16_f32 v{aV+i}, v{aV+2*i}, v{aV+2*i+1}')
        for i in range(4): I(f'v_mov_b32 v{aV+8+i}, s{sONES}')
        I(f'v_cndmask_b32 v{aV+12}, 0, 48, s[{sHALF}:{sHALF+1}]')
        I(f'v_xor_b32 v{aV+12}, v{aV+12}, v{vPH}')
        I(f'v_xor_b32 v{aV+13}, 32, v{aV+12}')
        I(f'v_xor_b32 v{aV+14}, 16, v{vPH}')
        I(f'ds_write_b128 v{aV+12}, {vr(aV,4)} offset:16384')
        I(f'ds_write_b128 v{aV+12}, {vr(aV+4,4)} offset:24576')
        I(f'ds_write_b128 v{aV+13}, {vr(aV+8,4)} offset:16384')
        I(f'ds_write_b128 v{aV+13}, {vr(aV+8,4)} offset:24576')
        self.softmax2(P0, P1)
        I(f'ds_write_b128 v{vPH}, {vr(P0,4)}'); I(f'ds_write_b128 v{aV+14}, {vr(P0+4,4)}')
        I(f'ds_write_b128 v{vPH}, {vr(P1,4)} offset:8192'); I(f'ds_write_b128 v{aV+14}, {vr(P1+4,4)} offset:8192')
        self.barrier()
        self.ts(3)
        I(f's_cmp_ge_u32 s{sW}, 2'); p.branch(f's_cbranch_scc1 L_nokv{x}')
        A = ACC; Bq = ACC + 32; Dk = AF
        def mm(k): I(f'v_mfma_f32_32x32x16_bf16 {vr(Dk,16)}, {vr(A+4*k,4)}, {vr(Bq+4*k,4)}, {"0" if k==0 else vr(Dk,16)}')
        for ks in range(8):
            I(f'ds_read_b64_tr_b16 {vr(A+4*ks,2)}, v{vOWN} offset:{ks*1024}')
            I(f'ds_read_b64_tr_b16 {vr(A+4*ks+2,2)}, v{vOTH} offset:{ks*1024+256}')
            I(f'ds_read_b64_tr_b16 {vr(Bq+4*ks,2)}, v{vX0} offset:{16384+ks*1024}')
            I(f'ds_read_b64_tr_b16 {vr(Bq+4*ks+2,2)}, v{vX1} offset:{16384+ks*1024+256}')
            if ks >= 2: mm(ks - 2)
        mm(6); mm(7)
        I(f's_add_u32 s{sT0}, s{sKVW}, {16*KVS}')
        for i in range(4): I(f'v_cvt_pk_bf16_f32 v{Dk+i}, v{Dk+2*i}, v{Dk+2*i+1}')
        I(f'buffer_store_dwordx4 {vr(Dk,4)}, v{vAR}, {WS}, s{sKVW} offen sc1')
        for i in range(4, 8): I(f'v_cvt_pk_bf16_f32 v{Dk+i}, v{Dk+2*i}, v{Dk+2*i+1}')
        I(f'buffer_store_dwordx4 {vr(Dk+4,4)}, v{vAR}, {WS}, s{sT0} offen sc1')
        p.wait(vm=0)
        I('s_mov_b64 exec, 1')
        I(f'buffer_atomic_add v{vONE}, off, {WS}, s{sFARW} sc1')
        I('s_mov_b64 exec, -1')
        p.label(f'L_nokv{x}')
        p.vm = []
        aQ = ACC
        steps = [(aQ, (lambda d, ks=ks: self.rdstrip(d, 16, ks)), XB + 4 * ks, ks == 0) for ks in range(32)]
        self.gemm(steps)
        self.barrier()
        I(f'ds_read_b64 {vr(AF,2)}, v{vEXT} offset:512')
        self.rdaphi(AF + 8)
        if fast and not FORCESLOW:
            I(f'v_mov_b32 v{TMP}, {L_MODE}')
            I(f'ds_read_b32 v{TMP}, v{TMP}')
            I(f'v_readfirstlane_b32 s{sPOLL}, v{TMP}')
            I(f's_cmp_eq_u32 s{sPOLL}, 0')
            p.branch('s_cbranch_scc1 L_afterqs')
        p.wait(lg=0)
        p.label('L_afterq' + x)
        I(f'v_mfma_f32_32x32x16_bf16 {vr(aQ,16)}, {vr(AF,4)}, {vr(BEXT,4)}, {vr(aQ,16)}')
        self.feat(aQ, P0, P1, AF + 8)
        self.softmax2(P0, P1)
        R = XB + 64
        for i in range(8): I(f'v_mov_b32 v{R+i}, 0')
        I(f's_lshl_b32 s{sT2}, s{sW}, 10')
        I(f'v_add_u32 v{TMP}, s{sT2}, v{vL2}')
        I(f's_add_u32 s{sT1}, s{sKVR}, 4096'); I(f's_add_u32 s{sT0}, s{sKVR}, 8192')
        self.ts(4)
        I(f's_cmp_lg_u32 s{sW}, 3'); p.branch(f's_cbranch_scc1 L_arok{x}')
        I(f'v_lshlrev_b32 v{TMP+1}, 3, v{vL0}')
        I(f's_mov_b32 s{sITER}, 0x8000')
        I('s_mov_b64 exec, 3')
        p.label(f'L_arp{x}')
        I(f'buffer_load_dword v{vP}, v{TMP+1}, {WS}, s{sFAR} offen sc1')
        I(f's_sub_u32 s{sITER}, s{sITER}, 1')
        p.wait(vm=0)
        I(f'v_cmp_gt_u32 vcc, 16, v{vP}')
        p.xbranch(f's_cbranch_vccz L_arq{x}')
        if SLEEP: I(f's_sleep {SLEEP}')
        p.xbranch(f's_cbranch_scc0 L_arp{x}')
        p.xlabel(f'L_arq{x}')
        I('s_mov_b64 exec, -1')
        p.label(f'L_arok{x}')
        self.bar()
        self.ts(5)
        for b in range(16):
            off = b * KVS; q = off // 4096
            I(f'buffer_load_dwordx4 {vr(XB+4*b,4)}, v{vAR}, {WS}, s{[sKVR,sT1,sT0][q]} offen offset:{off-q*4096} sc1')
        for b in range(16):
            for i in range(4):
                I(f'v_dot2c_f32_bf16 v{R+2*i}, s{sSELLO}, v{XB+4*b+i}')
                I(f'v_dot2c_f32_bf16 v{R+2*i+1}, s{sSELHI}, v{XB+4*b+i}')
        for i in range(4): I(f'v_cvt_pk_bf16_f32 v{R+i}, v{R+2*i}, v{R+2*i+1}')
        I(f'ds_write_b128 v{TMP}, {vr(R,4)} offset:{L_KVA-131072}')
        self.barrier()
        self.ts(6)
        for q in (0, 2, 1, 3): I(f'ds_read_b128 {vr(AF+4*q,4)}, v{vKVA} offset:{q*1024}')
        O0, O1 = ACC, ACC + 16
        I(f'v_mfma_f32_32x32x16_bf16 {vr(O0,16)}, {vr(AF,4)}, {vr(P0,4)}, 0')
        I(f'v_mfma_f32_32x32x16_bf16 {vr(O1,16)}, {vr(AF+8,4)}, {vr(P1,4)}, 0')
        I(f'v_mfma_f32_32x32x16_bf16 {vr(O0,16)}, {vr(AF+4,4)}, {vr(P0+4,4)}, {vr(O0,16)}')
        I(f'v_mfma_f32_32x32x16_bf16 {vr(O1,16)}, {vr(AF+12,4)}, {vr(P1+4,4)}, {vr(O1,16)}')
        self.setown(16 * G, 32768)
        self.setex(L_EX2)
        I(f'v_and_b32 v{TMP}, 28, v{vFO}')
        for O in (O0, O1):
            I(f'v_add_f32 v{O+8}, {f32(1e-6)}, v{O+8}')
            I(f'v_rcp_f32 v{O+8}, v{O+8}')
            for i in range(0, 8, 2): I(f'v_pk_mul_f32 {vr(O+i,2)}, {vr(O+i,2)}, {vr(O+8,2)} op_sel_hi:[1,0]')
            for i in range(4): I(f'v_cvt_pk_bf16_f32 v{O+i}, v{O+2*i}, v{O+2*i+1}')
            I(f'buffer_store_dwordx4 {vr(O,4)}, v{vL0}, {WS}, s{sOFW} offen offset:{0 if O==O0 else 1024}{self.sc}')
        own, oth = ACC + 32, ACC + 48
        self.res_init(own)
        self.signal(sFOCW)
        self.ts(7)
        self.poll(sFOCR, 0, TMP)
        self.ts(8)
        self.loadfrags(sOFR, [(XB + 4 * k, k) for k in range(NUP2)])
        steps = []
        for g in range(16):
            steps.append((own, (lambda d, o=g * 2048: self.rdtr(d, vOWN, o)), XB + 4 * g, False))
            steps.append((oth, (lambda d, o=g * 2048: self.rdtr(d, vOTH, o)), XB + 4 * g, g == 0))
        self.gemm(steps, at=self.later(sOFR, 16, NUP2))
        self.ts(9)
        self.exchange(own, oth, ACC)
        self.xstore(sX1W, sST1W)
        self.signal(sFX1W)
        self.ts(10)
        self.poll(sFX1R)
        self.ts(11)
        ST = ACC + 48
        self.loadfrags(sX1R, [(XB + 4 * k, k) for k in range(4)])
        self.loadstats(ST, sST1R)
        self.loadfrags(sX1R, [(XB + 4 * k, k) for k in range(4, NUP)])
        def unit(u, region, fill, fill_per, at):
            aG, aU = ACC + 32 * (u & 1), ACC + 32 * (u & 1) + 16
            steps = []
            for ks in range(32):
                steps.append((aG, (lambda d, ks=ks: self.rdstrip(d, region, ks)), XB + 4 * ks, ks == 0))
                steps.append((aU, (lambda d, ks=ks: self.rdstrip(d, region + 8, ks)), XB + 4 * ks, ks == 0))
            steps.append((aG, (lambda d: I(f'ds_read_b64 {vr(d,2)}, v{vEXT} offset:{1024+u*512}')), BEXT, False))
            steps.append((aU, (lambda d: I(f'ds_read_b64 {vr(d,2)}, v{vEXT} offset:{1024+u*512+256}')), BEXT, False))
            at.setdefault(64, []).append(self.barrier)
            self.gemm(steps, fill=fill, fill_per=fill_per, at=at)
        ids = []
        def hstore(u):
            Gr = ACC + 32 * (u & 1)
            def f():
                I(f's_add_u32 s{sT2}, s{sHFW}, {16*u*1024}'); I(f's_add_u32 s{sT3}, s{sHFW}, {(43+16*u)*1024}')
                ids.clear()
                ids.append(I(f'buffer_store_dwordx4 {vr(Gr,4)}, v{vL0}, {WS}, s{sT2} offen{self.sc}'))
                ids.append(I(f'buffer_store_dwordx4 {vr(Gr+4,4)}, v{vL0}, {WS}, s{sT3} offen{self.sc}'))
            return f
        def gel(u, packed):
            return self.gelu_ops(ACC + 32 * (u & 1), ACC + 32 * (u & 1) + 16, packed) + [hstore(u)]
        def sig(n):
            def f():
                assert len(ids) == 2
                self.signal(sFHCW, (n * 4 * FL,), ids); ids.clear()
            return f
        at = self.later(sX1R, 32, NUP)
        at.setdefault(BM, []).append(self.bar)
        unit(0, 0, [lambda: None] * 16 + self.stats_red(ST) + self.stats_fin(ST, 3), 2, at)
        self.ts(12)
        unit(1, 16, gel(0, False), FP, {BU1: [self.bar], 65: [sig(0)]})
        self.ts(13)
        I(f's_cmp_eq_u32 s{sHEAVY}, 0'); p.branch(f's_cbranch_scc1 L_light{x}')
        snap = p.snapshot()
        P0I = env('P0I', 24)
        at = {B7B: [self.bar], P0I: [lambda: self.poll_issue(sFHCR, 0)], P0I + 6: [lambda: self.poll_check(sFHCR, 0)], 65: [sig(1)]}
        for k in range(16):
            at.setdefault(max(P0I + 6 + 2 * k, 2 * k + 2), []).append(lambda k=k: self.loadfrags(sHFR, [(XB + 4 * k, k)]))
        unit(2, 0, gel(1, False), FP, at)
        self.poll_issue(sFHCR, 4 * FL)
        g2 = gel(2, True)
        self.run(g2[:40])
        self.poll_check(sFHCR, 4 * FL)
        self.loadfrags(sHFR, [(XB + 4 * k, k) for k in range(16, 24)])
        self.run(g2[40:])
        self.loadfrags(sHFR, [(XB + 4 * k, k) for k in range(24, 32)])
        snap2 = p.snapshot(); ids2 = list(ids)
        p.branch(f's_branch L_p3done{x}')
        p.label(f'L_light{x}')
        p.restore(snap)
        self.bar(); self.bar()
        self.run(gel(1, True))
        self.signal(sFHCW, (4 * FL,))
        self.poll(sFHCR, 0)
        self.loadfrags(sHFR, [(XB + 4 * k, k) for k in range(16)])
        self.poll(sFHCR, 4 * FL)
        self.loadfrags(sHFR, [(XB + 4 * k, k) for k in range(16, 32)])
        p.wait(vm=0)
        p.label(f'L_p3done{x}')
        p.restore(snap2)
        self.ts(14)
        self.res_init(own)
        self.setex(L_EX4)
        steps = []; at = {}
        cur = None
        for g in range(43):
            a = w4_slot(g) * G
            base = a // 65536 * 65536
            if base != cur:
                cur = base
                at.setdefault(('rd', 2 * g), []).append(lambda b=base: self.setown(b, 2048))
            steps.append((own, (lambda d, o=a - base: self.rdtr(d, vOWN, o)), XB + 4 * (g % 32), False))
            steps.append((oth, (lambda d, o=a - base: self.rdtr(d, vOTH, o)), XB + 4 * (g % 32), g == 0))
        at.setdefault(env('S2AT', 6), []).append(lambda: self.signal(sFHCW, (8 * FL,), ids2))
        P2I = env('P2I', 30)
        at.setdefault(P2I, []).append(lambda: self.poll_issue(sFHCR, 8 * FL))
        at.setdefault(P2I + 6, []).append(lambda: self.poll_check(sFHCR, 8 * FL))
        for k in range(32, 43):
            at.setdefault(P2I + 6 + (k - 32), []).append(lambda k=k: self.loadfrags(sHFR, [(XB + 4 * (k % 32), k)]))
        at.setdefault(env('B10', 20), []).append(self.bar)
        at.setdefault(env('B11', 64), []).append(self.bar)
        self.gemm(steps, at=at)
        self.ts(15)
        self.exchange(own, oth, ACC)
        I(f's_cmp_eq_u32 s{sLAYER}, 1'); p.branch(f's_cbranch_scc1 L_final{x}')
        self.xstore(sXNW, sSTNW)
        for s in LAY_A: I(f's_add_u32 s{s}, s{s}, {LBS:#x}')
        for s in LAY_F: I(f's_add_u32 s{s}, s{s}, {FLS}')
        I(f's_add_u32 s{sFAR}, s{sFAR}, 256'); I(f's_add_u32 s{sFARW}, s{sFARW}, 256')
        I(f's_mov_b32 s{sLAYER}, 1')
        I(f's_add_u32 s{sXNW}, s{sX1R}, {(XIN - X1F) & 0xffffffff:#x}'); I(f's_add_u32 s{sSTNW}, s{sST1R}, {(STIN - ST1) & 0xffffffff:#x}')
        self.signal(sFXW)
        self.ts(16)
        self.ts_save()
        self.ts(0)
        self.poll(sFXR)
        self.loadfrags(sXNW, [(XB + 4 * k, k) for k in range(4)])
        self.loadstats(ST, sSTNW)
        self.loadfrags(sXNW, [(XB + 4 * k, k) for k in range(4, NUP)])
        self.bar()
        self.ts(1)
        self.kvloop(self.kvaddr_ops() + self.stats_red(ST) + self.stats_fin(ST, 1), self.later(sXNW, 32, NUP))
        p.wait(vm=0)
        p.branch(f's_branch L_body{x}')
        p.label(f'L_final{x}')
        p.vm = []; p.lg = []
        t0, t1, t2 = TMP, TMP + 1, TMP + 2
        I(f'v_lshrrev_b32 v{t0}, 4, v{vL0}'); I(f'v_and_b32 v{t1}, 31, v{t0}'); I(f'v_lshrrev_b32 v{t2}, 5, v{t0}')
        I(f'v_lshlrev_b32 v{t0}, 10, v{t1}'); I(f'v_lshl_add_u32 v{t0}, v{t2}, 5, v{t0}')
        I(f's_lshl_b32 s{sT0}, s{sRT2}, 15'); I(f's_lshl_b32 s{sT1}, s{sCT}, 6'); I(f's_add_u32 s{sT0}, s{sT0}, s{sT1}')
        I(f'buffer_store_dwordx4 {vr(RES,4)}, v{t0}, {OUT}, s{sT0} offen')
        I(f'buffer_store_dwordx4 {vr(RES+4,4)}, v{t0}, {OUT}, s{sT0} offen offset:16')
        if TS:
            p.wait(vm=0)
            self.ts(16)
            self.ts_flush(vP, TMP + 4, vL0)
        I('s_endpgm')

    def colsum(self, w0, nw, strip, ext):
        p = self.p; I = self.I
        E = self.lab('cse'); L = self.lab('csl')
        I(f's_sub_u32 s{sA}, s{sW}, {w0}'); I(f's_cmp_ge_u32 s{sA}, {nw}'); p.branch(f's_cbranch_scc1 {E}')
        I(f's_lshl_b32 s{sB}, s{sA}, 15'); I(f's_add_u32 s{sB}, s{sB}, {strip*G}')
        I(f'v_add_u32 v{hB}, s{sB}, v{hT0}')
        I(f'v_mov_b32 v{hA0}, 0'); I(f'v_mov_b32 v{hA1}, 0')
        offs = [0, 512, 2048, 2560]
        p.wait(lg=0)
        for q in range(4): self.rdtr(hR + 4 * q, hB, offs[q])
        I(f's_mov_b32 s{sM}, 8')
        p.label(L)
        for q in range(4):
            p.wait_hard(lg=6); p.lg = []
            for e in range(4): I(f'v_dot2c_f32_bf16 v{hA0+(e&1)}, s{sONES}, v{hR+4*q+e}')
            self.rdtr(hR + 4 * q, hB, 4096 + offs[q]); p.lg = []
        I(f'v_add_u32 v{hB}, 4096, v{hB}')
        I(f's_sub_u32 s{sM}, s{sM}, 1'); I(f's_cmp_lg_u32 s{sM}, 0')
        p.branch(f's_cbranch_scc1 {L}')
        p.wait_hard(lg=0)
        I(f'v_add_f32 v{hA0}, v{hA0}, v{hA1}')
        I(f'v_mov_b32 v{hA1}, v{hA0}')
        I(f'v_permlane32_swap_b32 v{hA1}, v{hA0}')
        I(f'v_add_f32 v{hA0}, v{hA0}, v{hA1}')
        I(f'v_cvt_pk_bf16_f32 v{hA1}, v{hA0}, v{hA0}'); I(f'v_and_b32 v{hA1}, 0xffff0000, v{hA1}'); I(f'v_sub_f32 v{hA1}, v{hA0}, v{hA1}')
        I(f'v_cvt_pk_bf16_f32 v{hR}, v{hA0}, v{hA1}'); I(f'v_mov_b32 v{hR+1}, v{hR}')
        I(f'v_and_b32 v{hB}, 31, v0'); I(f'v_lshlrev_b32 v{hB}, 3, v{hB}')
        I(f's_lshl_b32 s{sB}, s{sA}, 8'); I(f's_add_u32 s{sB}, s{sB}, {ext}')
        I(f'v_add_u32 v{hB}, s{sB}, v{hB}')
        I(f'ds_write_b64 v{hB}, {vr(hR,2)}')
        p.wait(lg=0)
        p.label(E)
    def l0(self, fn):
        p = self.p; E = self.lab('l0e')
        self.I(f's_cmp_lg_u32 s{sLAYER}, 0'); p.branch(f's_cbranch_scc1 {E}')
        fn()
        p.label(E)
    def ldstrip(self, srd, voff, stride, col_s, dst, lds=None):
        I = self.I
        for q in range(8):
            s = col_s
            if q:
                s = sA + (q & 1)
                I(f's_add_u32 s{s}, s{col_s}, {q*64*stride}')
            if lds is None:
                I(f'buffer_load_dwordx4 {vr(dst+4*q,4)}, v{voff}, {sq(srd)}, s{s} offen')
            else:
                I(f's_add_u32 m0, s{sM+1}, {lds*G+q*4096}')
                I(f'buffer_load_dwordx4 v{voff}, {sq(srd)}, s{s} offen lds')
    def wr(self, src, n, grp):
        for q in range(n):
            a = grp * G + q * 4096
            self.I(f'ds_write_b128 v{hL0 + a // 65536}, {vr(src+4*q,4)} offset:{a%65536}')
            if q == 13: self.p.wait_hard(lg=8)
    def w4dma(self, g0, g1):
        I = self.I
        for g in range(g0, g1):
            s = sA + (g & 1)
            I(f's_add_u32 s{s}, s{self.sW4}, {g*32768}')
            I(f's_add_u32 m0, s{sM+1}, {w4_slot(g)*G}')
            I(f'buffer_load_dwordx4 v{hG2}, {sq(hWD)}, s{s} offen lds')
    def helper(self):
        p = self.p; I = self.I
        p.vm = []; p.lg = []
        bar = self.bar
        def hbar(): p.wait_hard(lg=0); I('s_barrier')
        I(f's_load_dwordx4 {sq(hW1)}, s[0:1], 8'); I(f's_load_dwordx4 {sq(hWG)}, s[0:1], 40')
        I(f's_load_dwordx2 s[{hWO}:{hWO+1}], s[0:1], 24'); I(f's_load_dwordx2 s[{hWD}:{hWD+1}], s[0:1], 56')
        I(f's_load_dwordx2 s[{sDB}:{sDB+1}], s[0:1], 72')
        sK, sU, sW2, sW4, sPF = 53, 54, 55, 55, 57
        self.sW4 = sW4
        sH1 = sM + 1
        I(f's_sub_u32 s{sH}, s{sW}, 4'); I(f's_and_b32 s{sCC}, s{sJ}, 7')
        I(f's_lshl_b32 s{sH1}, s{sH}, 10')
        I(f'v_lshrrev_b32 v{hB}, 2, v0'); I(f'v_and_b32 v{hA0}, 3, v0'); I(f'v_lshlrev_b32 v{hA0}, 4, v{hA0}')
        I(f'v_mul_u32_u24 v{hG1}, 3072, v{hB}'); I(f'v_add_u32 v{hG1}, v{hG1}, v{hA0}')
        I(f's_mul_i32 s{sK}, s{sH}, {16*3072}'); I(f's_lshl_b32 s{sA}, s{sJ}, 6'); I(f's_add_u32 s{sK}, s{sK}, s{sA}')
        I(f's_add_u32 s{sU}, s{sK}, 1024')
        p.wait_hard(lg=0)
        I(f's_mov_b32 s{hPH}, s{hW1+2}'); I(f's_mov_b32 s{hPH+1}, s{hW1+3}')
        I(f's_mov_b32 s{hWU}, s{hWG+2}'); I(f's_mov_b32 s{hWU+1}, s{hWG+3}')
        for srd, nb in ((hW1, 512 * 1536 * 2), (hPH, 32 * 512), (hWO, 512 * 512 * 2), (hWG, 512 * F * 2), (hWU, 512 * F * 2), (hWD, F * 512 * 2)):
            I(f's_mov_b32 s{srd+2}, {nb:#x}'); I(f's_mov_b32 s{srd+3}, 0x20000')
        self.ts(0)
        I(f's_cmp_lg_u32 s{sW}, 7'); p.branch('s_cbranch_scc1 L_h0')
        for i in range(4): I(f'v_mov_b32 v{hD+i}, 0')
        I(f's_lshl_b32 s{sA}, s{sRB}, 13'); I(f's_mul_i32 s{sB}, s{sJ}, 384'); I(f's_add_u32 s{sA}, s{sA}, s{sB}')
        I(f's_add_u32 s{sA}, s{sA}, {FLG:#x}')
        I(f's_lshl_b32 s{sB}, s{sJ}, 13'); I(f's_add_u32 s{sB}, s{sB}, {FLG+F_AR:#x}')
        I('s_mov_b32 exec_hi, 0'); I('s_mov_b32 exec_lo, 0xffffff')
        I(f'buffer_store_dwordx4 {vr(hD,4)}, v{vL0}, {WS}, s{sA} offen sc1')
        I('s_mov_b32 exec_lo, -1')
        I(f's_cmp_lg_u32 s{sRB}, 0'); p.branch('s_cbranch_scc1 L_h00')
        I(f'buffer_store_dwordx4 {vr(hD,4)}, v{vL0}, {WS}, s{sB} offen sc1')
        p.label('L_h00')
        I('s_mov_b64 exec, -1')
        I(f's_lshl_b32 s{sA}, s{sJ}, 10'); I(f's_mov_b32 m0, {L_PHIR}')
        I(f'buffer_load_dwordx4 v{vL0}, {sq(hPH)}, s{sA} offen lds')
        p.label('L_h0')
        p.vm = []
        self.ldstrip(hW1, hG1, 3072, sU, RW1)
        I(f's_add_u32 s{sU}, s{sK}, 2048')
        self.ldstrip(hW1, hG1, 3072, sU, RW1 + 32)
        I(f's_cmp_lg_u32 s{sW}, 7'); p.branch('s_cbranch_scc1 L_h1')
        I(f's_getreg_b32 s{sA}, hwreg(HW_REG_XCC_ID)')
        I(f's_and_b32 s{sA}, s{sA}, 15')
        I(f's_mul_i32 s{sB}, s{sA}, s{sA}'); I(f's_lshl_b32 s{sB}, s{sB}, 8'); I(f's_add_u32 s{sA}, s{sA}, s{sB}')
        I(f's_lshl_b32 s{sA}, s{sA}, 8'); I(f's_add_u32 s{sA}, s{sA}, 1')
        I(f's_lshl_b32 s{sXC}, s{sA}, 4')
        I(f'v_mov_b32 v{hD}, s{sA}'); I(f's_lshl_b32 s{sB}, s{sRB}, 4'); I(f'v_mov_b32 v{hD+1}, s{sB}')
        p._emit('s_waitcnt vmcnt(17)')
        I('s_mov_b64 exec, 1')
        snap = p.snapshot()
        I(f'global_atomic_add v{hD+1}, v{hD}, s[{sDB}:{sDB+1}] sc1')
        p.restore(snap)
        I('s_mov_b64 exec, -1')
        p.label('L_h1')
        self.ldstrip(hW1, hG1, 3072, sK, RW1 + 64)
        I(f'v_and_b32 v{hA1}, 7, v{hB}'); I(f'v_lshlrev_b32 v{hG2}, 10, v{hA1}')
        I(f'v_lshrrev_b32 v{hA1}, 5, v0'); I(f'v_lshl_add_u32 v{hG2}, v{hA1}, 6, v{hG2}'); I(f'v_add_u32 v{hG2}, v{hG2}, v{hA0}')
        I(f's_lshl_b32 s{sW2}, s{sH}, 13'); I(f's_lshl_b32 s{sA}, s{sCC}, 7'); I(f's_add_u32 s{sW2}, s{sW2}, s{sA}')
        for q in range(16):
            s = sW2
            if q:
                s = sA + (q & 1); I(f's_add_u32 s{s}, s{sW2}, {q*32768}')
            I(f'buffer_load_dwordx4 {vr(RW2+4*q,4)}, v{hG2}, {sq(hWO)}, s{s} offen')
        I(f'v_mul_u32_u24 v{hG3}, 2752, v{hB}'); I(f'v_add_u32 v{hG3}, v{hG3}, v{hA0}')
        I(f's_mul_i32 s{sK}, s{sH}, {16*2752}'); I(f's_lshl_b32 s{sA}, s{sJ}, 6'); I(f's_add_u32 s{sK}, s{sK}, s{sA}')
        I(f's_add_u32 s{sU}, s{sK}, 1024')
        self.ldstrip(hWG, hG3, 2752, sU, RW3)
        self.ldstrip(hWU, hG3, 2752, sU, RW3 + 32)
        I(f's_add_u32 s{sU}, s{sK}, 2048')
        I(f'v_add_u32 v{hL0}, s{sH1}, v{vL0}'); I(f'v_add_u32 v{hL1}, 0x10000, v{hL0}')
        self.trbase(hT0, 0, 'std', hA0, hA1)
        I(f's_mov_b32 s{sONES}, 0x3f803f80')
        I(f's_and_b32 s{sA}, s{sRB}, 1'); I(f's_lshl_b32 s{sA}, s{sA}, 1'); I(f's_lshr_b32 s{sB}, s{sJ}, 3'); I(f's_add_u32 s{sA}, s{sA}, s{sB}')
        I(f's_lshl_b32 s{sA}, s{sA}, 2'); I(f's_add_u32 s{sA}, s{sA}, s{sH}'); I(f's_mul_i32 s{sA}, s{sA}, 74'); I(f's_add_u32 s{sA}, s{sA}, 192')
        I(f's_lshl_b32 s{sPF}, s{sA}, 10'); I(f's_lshl_b32 s{sA}, s{sCC}, 7'); I(f's_add_u32 s{sPF}, s{sPF}, s{sA}')
        bar()
        self.wr(RW1, 16, 0)
        hbar()
        self.ts(1)
        self.wr(RW1 + 64, 8, 16)
        self.colsum(4, 2, 0, L_EXT1)
        I(f's_cmp_lg_u32 s{sW}, 7'); p.branch('s_cbranch_scc1 L_h2')
        I(f'v_bfe_u32 v{hA0}, v0, 1, 1'); I(f'v_bfe_u32 v{hA1}, v0, 4, 1'); I(f'v_lshl_add_u32 v{hA0}, v{hA1}, 1, v{hA0}')
        I(f'v_bfe_u32 v{hA1}, v0, 2, 2'); I(f'v_lshl_add_u32 v{hA0}, v{hA1}, 2, v{hA0}')
        I(f'v_lshrrev_b32 v{hA1}, 5, v0'); I(f'v_lshl_add_u32 v{hA0}, v{hA1}, 5, v{hA0}')
        I(f'v_lshlrev_b32 v{hA0}, 3, v{hA0}'); I(f'v_add_u32 v{hA0}, {L_PHIR}, v{hA0}')
        for hh in range(2):
            for t in range(2): I(f'ds_read_b64_tr_b16 {vr(hR+4*hh+2*t,2)}, v{hA0} offset:{hh*512+t*128}')
        I(f'v_bfe_u32 v{hA1}, v0, 2, 1'); I(f'v_mul_u32_u24 v{hA1}, 0x8000, v{hA1}'); I(f'v_lshl_or_b32 v{hA1}, v{hA1}, 16, v{hA1}')
        I(f'v_lshlrev_b32 v{hB}, 4, v0'); I(f'v_add_u32 v{hB}, {L_APHI}, v{hB}')
        for q in range(8): I(f'v_xor_b32 v{hR+q}, v{hR+q}, v{hA1}')
        I(f'ds_write_b128 v{hB}, {vr(hR,4)}'); I(f'ds_write_b128 v{hB}, {vr(hR+4,4)} offset:1024')
        p.wait(lg=0)
        p.label('L_h2')
        hbar()
        p.label('L_hbody')
        p.vm = []
        bar()
        self.ts(2)
        self.ldstrip(hWG, hG3, 2752, sK, None, 0)
        self.ldstrip(hWU, hG3, 2752, sK, None, 8)
        def shake():
            I(f's_cmp_lg_u32 s{sW}, 7'); p.branch('s_cbranch_scc1 L_h3')
            I(f's_mov_b32 s{sITER}, 0x4000'); I(f's_lshl_b32 s{sM}, s{sRB}, 4')
            p.label('L_hs')
            I(f's_load_dword s{sA}, s[{sDB}:{sDB+1}], s{sM} glc'); I(f's_load_dword s{sB}, s[{sDB}:{sDB+1}], 0 glc')
            I(f's_sub_u32 s{sITER}, s{sITER}, 1'); p.branch('s_cbranch_scc1 L_hs2')
            p.wait_hard(lg=0)
            I(f's_and_b32 s{sB}, s{sB}, s{sA}'); I(f's_bitcmp1_b32 s{sB}, 4')
            p.branch('s_cbranch_scc0 L_hs')
            p.label('L_hs2')
            p.wait_hard(lg=0)
            I(f's_cmp_eq_u32 s{sA}, s{sXC}'); I(f's_cselect_b32 s{sA}, 1, 0')
            I(f'v_mov_b32 v{hA0}, s{sA}'); I(f'v_mov_b32 v{hA1}, {L_MODE}')
            I(f'ds_write_b32 v{hA1}, v{hA0}')
            p.wait(lg=0)
            p.label('L_h3')
        self.l0(shake)
        bar()
        self.ts(3)
        self.l0(lambda: self.colsum(6, 1, 16, L_EXT1 + 512))
        bar()
        p._emit('s_waitcnt vmcnt(32)')
        self.wr(RW2, 16, 16)
        bar()
        hbar()
        self.ts(4)
        p.wait_hard(vm=0); bar()
        self.ts(5)
        self.wr(RW3, 16, 16)
        self.l0(lambda: self.colsum(4, 2, 0, L_EXT3))
        hbar()
        self.ts(6)
        def pf():
            I(f'v_lshlrev_b32 v{hB}, 10, v0')
            I(f's_add_u32 s{sA}, s{sPF}, {10*1024}')
            I(f'buffer_load_dword v{hD}, v{hB}, {sq(hWD)}, s{sPF} offen')
            I(f'buffer_load_dword v{hD+1}, v{hB}, {sq(hWD)}, s{sA} offen')
        self.w4dma(0, 6)
        if PFAT == 0: pf()
        bar()
        self.ts(7)
        I(f's_cmp_eq_u32 s{sHEAVY}, 0'); p.branch('s_cbranch_scc1 L_hlight')
        self.ldstrip(hWG, hG3, 2752, sU, None, 0)
        self.ldstrip(hWU, hG3, 2752, sU, None, 8)
        p.label('L_hlight')
        if PFAT == 1: pf()
        self.l0(lambda: self.colsum(6, 2, 16, L_EXT3 + 512))
        bar()
        p.wait_hard(vm=2 if PFAT == 1 else 0); bar()
        self.ts(8)
        self.w4dma(6, 22)
        def cs2():
            E = self.lab('nh')
            I(f's_cmp_eq_u32 s{sHEAVY}, 0'); p.branch(f's_cbranch_scc1 {E}')
            self.colsum(4, 2, 0, L_EXT3 + 1024)
            p.label(E)
        self.l0(cs2)
        bar()
        self.w4dma(22, 30)
        p.wait_hard(vm=8); bar()
        self.ts(9)
        self.w4dma(30, 38)
        p.wait_hard(vm=0); bar()
        self.w4dma(38, 43)
        p.wait_hard(vm=0); bar()
        self.ts(10)
        bar()
        self.ts(11)
        I(f's_cmp_eq_u32 s{sLAYER}, 1'); p.branch('s_cbranch_scc1 L_hend')
        self.wr(RW1, 16, 0)
        self.ts_save()
        hbar()
        self.ts(1)
        self.wr(RW1 + 64, 8, 16)
        hbar()
        I(f's_mov_b32 s{sLAYER}, 1')
        p.branch('s_branch L_hbody')
        p.label('L_hend')
        if TS:
            I(f'v_lshlrev_b32 v{hA0}, 4, v0')
            self.ts_flush(hA1, hB, hA0)

def desc(name, vg=256):
    return f""".p2align 6
.amdhsa_kernel {name}
  .amdhsa_next_free_vgpr {vg}
  .amdhsa_next_free_sgpr 102
  .amdhsa_accum_offset {vg}
  .amdhsa_group_segment_fixed_size 0
  .amdhsa_kernarg_size 88
  .amdhsa_user_sgpr_count 2
  .amdhsa_user_sgpr_kernarg_segment_ptr 1
  .amdhsa_system_sgpr_workgroup_id_x 1
.end_amdhsa_kernel
"""
if __name__ == '__main__':
    out = [a for a in sys.argv[1:] if not a.startswith('--')][0]
    ref = open(f'cdna_kernels/{NAME}.s.ref').read().split('\n')
    hdr = [l for l in ref if l.startswith(';') and '@launch' not in l]
    k = K(); k.main()
    txt = '\n'.join(hdr) + '\n'
    txt += f'; @launch grid=(256,1,1) block=(512,1,1) lds={LDS_BYTES}\n'
    txt += '.amdgcn_target "amdgcn-amd-amdhsa--gfx950"\n.text\n' + k.p.text()
    txt += '.section .rodata,"a"\n' + desc(NAME + '_kernel')
    open(out, 'w').write(txt)
    print(k.p.stats)
```

```python
import sys, math, os
from asm import Prog
from layout import *

NAME = 'interleave_layers__linear_kernel_hedgehog__geglu_ffn__prompt'
TS = '--ts' in sys.argv
def f32(x):
    import struct
    return '0x%08x' % struct.unpack('<I', struct.pack('<f', x))[0]
def vr(a, n): return f'v[{a}:{a+n-1}]' if n > 1 else f'v{a}'
def env(n, d): return int(os.environ.get(n, d))

WS = 's[4:7]'; OUT = 's[8:11]'; XS = 's[96:99]'
sRB, sJ, sW, sHEAVY, sLAYER = 12, 13, 14, 15, 16
sRT, sRT2, sCT = 17, 18, 19
(sKVR, sKVW, sOFW, sOFR, sX1W, sST1W, sX1R, sST1R, sHFW, sHFR) = range(20, 30)
LAY_A = list(range(20, 30))
(sFOCW, sFOCR, sFX1W, sFX1R, sFHCW, sFHCR) = range(30, 36)
LAY_F = list(range(30, 36))
sFAR, sFARW = 36, 37
sXNW, sSTNW, sFXW, sFXR = 38, 39, 40, 41
sHALF = 42
sT0, sT1, sT2, sT3, sT4, sT5 = 44, 45, 46, 47, 48, 49
sONES, sSELLO, sSELHI, sMASKHI = 51, 52, 53, 54
sPOLL, sITER = 55, 56
sTSA = 58
sTS = 60
NTS = 18
vHS = 0
vL0, vT0, vT1, vL8, vL2, vAR, vKVA, vPH, vEXT, vOWN, vOTH, vX0, vX1, vFO, vP = range(1, 16)
XB, ACC, AF, RES, BEXT, CON, TMP = 16, 144, 208, 232, 240, 244, 248
vONE = CON + 3
NAF = 6
NUP = env('NUP', 14)
NUP2 = env('NUP2', 16)
SLEEP = env('SLEEP', 1)
FORCESLOW = env('FORCESLOW', 0)
BE = env('BE', 56); BM = env('BM', 44); BU1 = env('BU1', 48); B7B = env('B7B', 38)
FP = env('FP', 3)
PFAT = env('PFAT', 1)
PAIRW = env('PAIRW', 1)
DBGT = env('DBGT', 0)
CPF = env('CPF', 0)
hW1, hWO, hWG, hWU, hWD, hPH = 20, 24, 28, 32, 36, 40
sH, sCC, sA, sB, sM = 44, 45, 46, 47, 48
sDB = 96
sXC = 52
hL0, hL1, hG1, hG3, hG2, hT0, hB, hA0, hA1 = 1, 2, 3, 4, 5, 6, 7, 8, 9
hR = 12
hD = 28
RW1, RW2, RW3 = 32, 128, 192
def sq(a): return f's[{a}:{a+3}]'

class K:
    def __init__(self):
        self.p = Prog(); self.uid = 0; self.ool = []; self.sc = ''; self.x = ''
    def I(self, t): return self.p.I(t)
    def lab(self, base):
        self.uid += 1; return f'L_{base}_{self.uid}'
    def ts(self, idx):
        if not TS: return
        self.p.wait(lg=0)
        self.I(f's_memrealtime s[{sTSA}:{sTSA+1}]'); self.p.wait_hard(lg=0)
        self.I(f's_mov_b32 s{sTS+idx}, s{sTSA}')
    def ts_save(self):
        if not TS: return
        for i in range(NTS): self.I(f's_mov_b32 s{sTS+NTS+i}, s{sTS+i}')
    def ts_flush(self, va, vb, vl):
        if not TS: return
        p = self.p
        self.I(f'v_mov_b32 v{va}, 0')
        for i in range(2 * NTS):
            self.I(f'v_writelane_b32 v{va}, s{sTS+(i+NTS)%(2*NTS)}, {i}')
        self.I(f's_lshl_b32 s{sT0}, s2, 3'); self.I(f's_add_u32 s{sT0}, s{sT0}, s{sW}')
        self.I(f's_lshl_b32 s{sT0}, s{sT0}, 8'); self.I(f's_add_u32 s{sT0}, s{sT0}, {TSB}')
        self.I(f'v_lshrrev_b32 v{vb}, 2, v{vl}')
        self.I(f'buffer_store_dword v{va}, v{vb}, {WS}, s{sT0} offen')
        p.wait(vm=0)
    def barrier(self):
        self.p.wait(lg=0)
        self.I('s_barrier')
    def bar(self): self.I('s_barrier')
    def rdtr(self, dst, base, off):
        self.I(f'ds_read_b64_tr_b16 {vr(dst,2)}, v{base} offset:{off}')
        self.I(f'ds_read_b64_tr_b16 {vr(dst+2,2)}, v{base} offset:{off+256}')
    def rdstrip(self, dst, strip, ks):
        a = strip * G + (32 * (ks >> 1) + 8 * (ks & 1)) * 64
        self.rdtr(dst, vT0 + a // 65536, a % 65536)
    def poll(self, sflag, off=0, vo=vFO):
        p = self.p
        L = self.lab('poll'); Dn = self.lab('pdone')
        self.I(f's_mov_b32 s{sITER}, 0x8000')
        p.label(L)
        self.I(f'buffer_load_dword v{vP}, v{vo}, {WS}, s{sflag} offen offset:{off} sc1')
        self.I(f's_sub_u32 s{sITER}, s{sITER}, 1')
        p.wait(vm=0)
        self.I(f'v_cmp_eq_u32 vcc, 0, v{vP}')
        p.xbranch(f's_cbranch_vccz {Dn}')
        p.xbranch(f's_cbranch_scc0 {L}')
        p.xlabel(Dn)
    def poll_issue(self, sflag, off):
        self.I(f'buffer_load_dword v{vP}, v{vFO}, {WS}, s{sflag} offen offset:{off} sc1')
    def poll_check(self, sflag, off):
        p = self.p
        L = self.lab('slow'); Bk = self.lab('back')
        self.I(f'v_cmp_eq_u32 vcc, 0, v{vP}')
        p.xbranch(f's_cbranch_vccnz {L}')
        p.xlabel(Bk)
        self.ool.append(f"""{L}:
  s_mov_b32 s{sITER}, 0x8000
{L}b:
  buffer_load_dword v{vP}, v{vFO}, {WS}, s{sflag} offen offset:{off} sc1
  s_sub_u32 s{sITER}, s{sITER}, 1
  s_waitcnt vmcnt(0)
  v_cmp_eq_u32 vcc, 0, v{vP}
  s_cbranch_vccz {Bk}
  s_cbranch_scc0 {L}b
  s_branch {Bk}""")
    def signal(self, sflag, offs=(0,), ids=None):
        p = self.p
        if ids is None: p.wait(vm=0)
        else:
            for i in ids: p.wait_vm_id(i)
        self.I('s_mov_b64 exec, 1')
        for o in offs: self.I(f'buffer_store_dword v{vONE}, off, {WS}, s{sflag} offset:{o}{self.sc}')
        self.I('s_mov_b64 exec, -1')
    def loadfrags(self, sbase, idxs):
        cur = None
        for reg, idx in idxs:
            q = idx // 4
            if q != cur:
                cur = q
                if q == 0: s = sbase
                else:
                    s = sT0 + (q & 1)
                    self.I(f's_add_u32 s{s}, s{sbase}, {q*4096}')
            self.I(f'buffer_load_dwordx4 {vr(reg,4)}, v{vL0}, {WS}, s{s} offen offset:{(idx%4)*1024} sc1')
    def later(self, sbase, n, nup, at=None):
        at = {} if at is None else at
        for k in range(nup, n):
            at.setdefault(2 * (k - nup) + 2, []).append(lambda k=k: self.loadfrags(sbase, [(XB + 4 * (k % 32), k)]))
        return at
    def loadstats(self, dst, sbase):
        for i in range(8):
            self.I(f'buffer_load_dwordx2 {vr(dst+2*i,2)}, v{vL8}, {WS}, s{sbase} offen offset:{i*512} sc1')
    def stats_red(self, st):
        o = []
        for i in range(1, 8):
            o.append(f'v_add_f32 v{st}, v{st}, v{st+2*i}')
            o.append(f'v_add_f32 v{st+1}, v{st+1}, v{st+2*i+1}')
        return o
    def stats_fin(self, st, mode):
        o = []
        o.append(f'v_mov_b32 v{st+2}, v{st}')
        o.append(f'v_mov_b32 v{st+3}, v{st+1}')
        o.append(f'v_permlane32_swap_b32 v{st+2}, v{st}')
        o.append(f'v_permlane32_swap_b32 v{st+3}, v{st+1}')
        o.append(f'v_add_f32 v{st}, v{st}, v{st+2}')
        o.append(f'v_add_f32 v{st+1}, v{st+1}, v{st+3}')
        o.append(f'v_mul_f32 v{st}, {f32(-1/512)}, v{st}')
        o.append(f'v_mul_f32 v{st+1}, {f32(1/512)}, v{st+1}')
        o.append(f'v_fma_f32 v{st+1}, -v{st}, v{st}, v{st+1}')
        o.append(f'v_cvt_pk_bf16_f32 v{BEXT}, v{st}, v{st}')
        o.append(f'v_max_f32 v{st+1}, 0, v{st+1}')
        o.append(f'v_add_f32 v{st+1}, {f32(1e-5)}, v{st+1}')
        o.append(f'v_and_b32 v{st+2}, s{sMASKHI}, v{BEXT}')
        o.append(f'v_rsq_f32 v{st+3}, v{st+1}')
        o.append(f'v_sub_f32 v{st+2}, v{st}, v{st+2}')
        o.append(f'v_cvt_pk_bf16_f32 v{BEXT+1}, v{st+2}, v{st+2}')
        o.append(f'v_cndmask_b32 v{BEXT}, v{BEXT}, 0, s[{sHALF}:{sHALF+1}]')
        o.append(f'v_cndmask_b32 v{BEXT+1}, v{BEXT+1}, 0, s[{sHALF}:{sHALF+1}]')
        if mode == 1:
            o.append(f'v_mul_f32 v{CON}, {f32(math.log2(math.e))}, v{st+3}')
            o.append(f'v_mov_b32 v{CON+2}, v{st+3}')
        else:
            c0 = -2 * math.log2(math.e) * math.sqrt(2 / math.pi)
            o.append(f'v_mul_f32 v{CON}, {f32(c0)}, v{st+3}')
            o.append(f'v_mul_f32 v{st+2}, v{st+3}, v{st+3}')
            o.append(f'v_mul_f32 v{st+2}, {f32(0.044715)}, v{st+2}')
            o.append(f'v_mul_f32 v{CON+1}, v{CON}, v{st+2}')
            o.append(f'v_mov_b32 v{CON+2}, v{st+1}')
        return o
    def kvaddr_ops(self):
        l, r_, c_, g_, t0, t1 = TMP, TMP + 1, TMP + 2, TMP + 3, TMP + 4, TMP + 5
        o = [f'v_lshrrev_b32 v{l}, 4, v{vL0}',
             f'v_bfe_u32 v{r_}, v{l}, 2, 2', f'v_and_b32 v{c_}, 3, v{l}', f'v_bfe_u32 v{g_}, v{l}, 4, 1',
             f'v_lshrrev_b32 v{t0}, 5, v{l}',
             f'v_lshl_add_u32 v{t0}, v{t0}, 3, v{r_}', f'v_lshlrev_b32 v{t0}, 6, v{t0}',
             f'v_lshrrev_b32 v{t1}, 1, v{c_}', f'v_lshl_add_u32 v{t0}, v{t1}, 3, v{t0}',
             f's_lshl_b32 s{sT4}, s{sW}, 13', f's_add_u32 s{sT4}, s{sT4}, {L_SCRT}',
             f'v_add_u32 v{t0}, s{sT4}, v{t0}',
             f'v_lshrrev_b32 v{r_}, 1, v{r_}', f'v_and_b32 v{t1}, 1, v{c_}',
             f'v_lshl_add_u32 v{vOWN}, v{t1}, 1, v{g_}', f'v_lshl_add_u32 v{vX0}, v{g_}, 1, v{t1}',
             f'v_xor_b32 v{vOWN}, v{vOWN}, v{r_}', f'v_xor_b32 v{vX0}, v{vX0}, v{r_}',
             f'v_lshl_add_u32 v{vOWN}, v{vOWN}, 4, v{t0}', f'v_lshl_add_u32 v{vX0}, v{vX0}, 4, v{t0}',
             f'v_xor_b32 v{vOTH}, 32, v{vOWN}', f'v_xor_b32 v{vX1}, 32, v{vX0}']
        return o
    def gemm(self, steps, fill=None, fill_per=4, at=None, lead=NAF-1, pair=True):
        p = self.p
        fill = list(fill or [])
        n = len(steps); issued = 0; at = at or {}
        for i in range(n):
            for f in at.get(i, []): f()
            while issued < n and issued <= i + lead:
                for f in at.get(('rd', issued), []): f()
                steps[issued][1](AF + 4 * (issued % NAF)); issued += 1
            acc, _, b, first = steps[i]
            if pair and PAIRW and i % 2 == 0 and i + 1 < n:
                p.touch([f'v{AF+4*((i+1)%NAF)+q}' for q in range(4)])
            c = '0' if first else vr(acc, 16)
            self.I(f'v_mfma_f32_32x32x16_bf16 {vr(acc,16)}, {vr(AF+4*(i%NAF),4)}, {vr(b,4)}, {c}')
            budget = fill_per
            while fill and budget > 0:
                t = fill.pop(0)
                if callable(t): t(); budget -= 1; continue
                self.I(t)
                budget -= 2 if t.split()[0] in ('v_exp_f32', 'v_rcp_f32', 'v_rsq_f32') else 1
        self.run(fill)
    def run(self, l):
        for t in l:
            if callable(t): t()
            else: self.I(t)
    def softmax2(self, P0, P1):
        I = self.I
        Ps = (P0, P1); m = (TMP, TMP + 2); s = (TMP + 4, TMP + 6)
        for a in range(2): I(f'v_max3_f32 v{m[a]}, v{Ps[a]}, v{Ps[a]+1}, v{Ps[a]+2}')
        for i in range(3, 15, 2):
            for a in range(2): I(f'v_max3_f32 v{m[a]}, v{m[a]}, v{Ps[a]+i}, v{Ps[a]+i+1}')
        for a in range(2): I(f'v_max_f32 v{m[a]}, v{m[a]}, v{Ps[a]+15}')
        for a in range(2): I(f'v_mul_f32_e64 v{m[a]}, -v{CON}, v{m[a]}')
        for i in range(0, 16, 2):
            for a in range(2):
                I(f'v_pk_fma_f32 {vr(Ps[a]+i,2)}, {vr(Ps[a]+i,2)}, {vr(CON,2)}, {vr(m[a],2)} op_sel_hi:[1,0,0]')
        for i in range(16):
            for a in range(2): I(f'v_exp_f32 v{Ps[a]+i}, v{Ps[a]+i}')
        for a in range(2): I(f'v_pk_add_f32 {vr(s[a],2)}, {vr(Ps[a],2)}, {vr(Ps[a]+2,2)}')
        for i in range(4, 16, 2):
            for a in range(2): I(f'v_pk_add_f32 {vr(s[a],2)}, {vr(s[a],2)}, {vr(Ps[a]+i,2)}')
        for a in range(2): I(f'v_add_f32 v{s[a]}, v{s[a]}, v{s[a]+1}')
        for a in range(2): I(f'v_rcp_f32 v{s[a]}, v{s[a]}')
        for i in range(0, 16, 2):
            for a in range(2):
                I(f'v_pk_mul_f32 {vr(Ps[a]+i,2)}, {vr(Ps[a]+i,2)}, {vr(s[a],2)} op_sel_hi:[1,0]')
        for i in range(8):
            for a in range(2): I(f'v_cvt_pk_bf16_f32 v{Ps[a]+i}, v{Ps[a]+2*i}, v{Ps[a]+2*i+1}')
    def rdaphi(self, A):
        self.I(f'ds_read_b128 {vr(A,4)}, v{vL2} offset:{L_APHI-131072}')
        self.I(f'ds_read_b128 {vr(A+4,4)}, v{vL2} offset:{L_APHI-131072+1024}')
    def feat(self, acc, P0, P1, A):
        I = self.I
        for i in range(8): I(f'v_cvt_pk_bf16_f32 v{acc+i}, v{acc+2*i}, v{acc+2*i+1}')
        I(f'v_mfma_f32_32x32x16_bf16 {vr(P0,16)}, {vr(A,4)}, {vr(acc,4)}, 0')
        I(f'v_mfma_f32_32x32x16_bf16 {vr(P1,16)}, {vr(A+4,4)}, {vr(acc+4,4)}, 0')
    def gelu_ops(self, Gr, Ur, packed):
        o = []
        if not packed:
            for i in range(0, 16, 2):
                t = [TMP + (i % 8), TMP + (i % 8) + 1]
                for a in range(2): o.append(f'v_mul_f32 v{t[a]}, v{Gr+i+a}, v{Gr+i+a}')
                for a in range(2): o.append(f'v_fma_f32 v{t[a]}, v{t[a]}, v{CON+1}, v{CON}')
                for a in range(2): o.append(f'v_mul_f32 v{t[a]}, v{t[a]}, v{Gr+i+a}')
                for a in range(2): o.append(f'v_exp_f32 v{t[a]}, v{t[a]}')
                for a in range(2): o.append(f'v_mul_f32 v{Ur+i+a}, v{Ur+i+a}, v{Gr+i+a}')
                for a in range(2): o.append(f'v_fma_f32 v{t[a]}, v{t[a]}, v{CON+2}, v{CON+2}')
                for a in range(2): o.append(f'v_rcp_f32 v{t[a]}, v{t[a]}')
                if i: o.append(f'v_cvt_pk_bf16_f32 v{Gr+i//2-1}, v{Ur+i-2}, v{Ur+i-1}')
                else: o.append('v_nop')
                for a in range(2): o.append(f'v_mul_f32 v{Ur+i+a}, v{Ur+i+a}, v{t[a]}')
            o.append(f'v_cvt_pk_bf16_f32 v{Gr+7}, v{Ur+14}, v{Ur+15}')
        else:
            for i0 in range(0, 16, 8):
                idx = range(i0, i0 + 8, 2)
                T = lambda i: vr(TMP + (i % 8), 2)
                for i in idx: o.append(f'v_pk_mul_f32 {T(i)}, {vr(Gr+i,2)}, {vr(Gr+i,2)}')
                for i in idx: o.append(f'v_pk_fma_f32 {T(i)}, {T(i)}, {vr(CON,2)}, {vr(CON,2)} op_sel:[0,1,0] op_sel_hi:[1,1,0]')
                for i in idx: o.append(f'v_pk_mul_f32 {T(i)}, {T(i)}, {vr(Gr+i,2)}')
                for i in range(8): o.append(f'v_exp_f32 v{TMP+i}, v{TMP+i}')
                for i in idx: o.append(f'v_pk_mul_f32 {vr(Ur+i,2)}, {vr(Ur+i,2)}, {vr(Gr+i,2)}')
                for i in idx: o.append(f'v_pk_fma_f32 {T(i)}, {T(i)}, {vr(CON+2,2)}, {vr(CON+2,2)} op_sel_hi:[1,0,0]')
                for i in range(8): o.append(f'v_rcp_f32 v{TMP+i}, v{TMP+i}')
                for i in idx: o.append(f'v_pk_mul_f32 {vr(Ur+i,2)}, {vr(Ur+i,2)}, {T(i)}')
                for i in idx: o.append(f'v_cvt_pk_bf16_f32 v{Gr+i//2}, v{Ur+i}, v{Ur+i+1}')
        return o
    def res_init(self, acc):
        for i in range(8):
            self.I(f'v_lshlrev_b32 v{acc+2*i}, 16, v{RES+i}')
            self.I(f'v_and_b32 v{acc+2*i+1}, s{sMASKHI}, v{RES+i}')
    def setown(self, base, khmul):
        I = self.I
        I(f's_lshr_b32 s{sT2}, s{sW}, 1')
        I(f's_mul_i32 s{sT3}, s{sT2}, {khmul+512}'); I(f's_add_u32 s{sT3}, s{sT3}, {base}')
        I(f's_xor_b32 s{sT4}, s{sT3}, 512')
        I(f'v_add_u32 v{vOWN}, s{sT3}, v{vHS}'); I(f'v_add_u32 v{vOTH}, s{sT4}, v{vHS}')
    def setex(self, exbase):
        I = self.I
        I(f's_lshl_b32 s{sT3}, s{sW}, 12'); I(f's_xor_b32 s{sT4}, s{sT3}, 8192')
        I(f's_add_u32 s{sT3}, s{sT3}, {exbase}'); I(f's_add_u32 s{sT4}, s{sT4}, {exbase}')
        I(f'v_add_u32 v{vX0}, s{sT3}, v{vL0}'); I(f'v_add_u32 v{vX1}, s{sT4}, v{vL0}')
    def exchange(self, own, oth, tmp):
        I = self.I
        for q in range(4):
            I(f'ds_write_b128 v{vX0}, {vr(oth+4*q,4)} offset:{q*1024}')
        self.barrier()
        for q in range(4):
            I(f'ds_read_b128 {vr(tmp+4*q,4)}, v{vX1} offset:{q*1024}')
        for q in range(4):
            for i in range(4 * q, 4 * q + 4, 2):
                I(f'v_pk_add_f32 {vr(own+i,2)}, {vr(own+i,2)}, {vr(tmp+i,2)}')
            for i in range(2 * q, 2 * q + 2):
                I(f'v_cvt_pk_bf16_f32 v{RES+i}, v{own+2*i}, v{own+2*i+1}')
    def xstore(self, sfr, sst):
        I = self.I
        I(f'buffer_store_dwordx4 {vr(RES,4)}, v{vL0}, {WS}, s{sfr} offen{self.sc}')
        I(f'buffer_store_dwordx4 {vr(RES+4,4)}, v{vL0}, {WS}, s{sfr} offen offset:1024{self.sc}')
        a = TMP
        for i in range(4): I(f'v_mov_b32 v{a+i}, 0')
        for i in range(8):
            I(f'v_dot2c_f32_bf16 v{a+2*(i&1)}, s{sONES}, v{RES+i}')
            I(f'v_dot2c_f32_bf16 v{a+1+2*(i&1)}, v{RES+i}, v{RES+i}')
        I(f'v_pk_add_f32 {vr(a,2)}, {vr(a,2)}, {vr(a+2,2)}')
        I(f'v_mov_b32 v{a+2}, v{a}'); I(f'v_mov_b32 v{a+3}, v{a+1}')
        I(f'v_permlane32_swap_b32 v{a+2}, v{a}'); I(f'v_permlane32_swap_b32 v{a+3}, v{a+1}')
        I(f'v_pk_add_f32 {vr(a,2)}, {vr(a,2)}, {vr(a+2,2)}')
        I('s_mov_b32 exec_hi, 0')
        I(f'buffer_store_dwordx2 {vr(a,2)}, v{vL8}, {WS}, s{sst} offen{self.sc}')
        I('s_mov_b32 exec_hi, -1')

    def main(self):
        p = self.p; I = self.I
        KN = NAME + '_kernel'
        p.raw(f'.globl {KN}\n.p2align 8\n.type {KN},@function\n{KN}:')
        I('s_cmp_ge_u32 s2, 256'); p.branch('s_cbranch_scc1 L_end')
        I('s_load_dwordx2 s[4:5], s[0:1], 80')
        if DBGT:
            I('s_load_dwordx2 s[60:61], s[0:1], 72'); I('s_memrealtime s[62:63]')
        if CPF:
            I('s_getpc_b64 s[64:65]')
            I('s_lshr_b32 s66, s2, 3'); I('s_and_b32 s66, s66, 7')
            I('v_lshlrev_b32 v20, 7, v0'); I('v_lshrrev_b32 v21, 6, v0')
            I(f'v_cmp_gt_u32 vcc, {CPF*1024:#x}, v20')
            I('v_cmp_eq_u32 s[68:69], s66, v21')
            I('s_and_b64 vcc, vcc, s[68:69]')
            I('s_and_saveexec_b64 s[66:67], vcc')
            snap = p.snapshot()
            I('global_load_dword v21, v20, s[64:65]')
            p.restore(snap)
            I('s_mov_b64 exec, s[66:67]')
        I(f'v_readfirstlane_b32 s{sW}, v0')
        I('v_and_b32 v0, 63, v0')
        I(f's_mov_b32 s6, {WS_BYTES:#x}'); I('s_mov_b32 s7, 0x20000')
        I(f's_lshr_b32 s{sW}, s{sW}, 6')
        I(f's_and_b32 s{sT0}, s2, 7'); I(f's_lshr_b32 s{sT1}, s2, 3')
        I(f's_lshr_b32 s{sJ}, s{sT1}, 1'); I(f's_and_b32 s{sT1}, s{sT1}, 1')
        I(f's_lshl_b32 s{sRB}, s{sT0}, 1'); I(f's_add_u32 s{sRB}, s{sRB}, s{sT1}')
        I(f's_mov_b32 s{sLAYER}, 0')
        I(f'v_lshlrev_b32 v{vL0}, 4, v0')
        I(f's_cmp_lt_u32 s{sJ}, 11'); I(f's_cselect_b32 s{sHEAVY}, 1, 0')
        I(f's_cmp_ge_u32 s{sW}, 4'); p.branch('s_cbranch_scc1 L_helper')
        self.cprologue()
        self.sc = ' sc1' if FORCESLOW else ''; self.x = ''
        snap = p.snapshot()
        self.body(True)
        p.restore(snap)
        self.sc = ' sc1'; self.x = 's'
        self.body(False)
        p.label('L_helper')
        self.helper()
        p.label('L_end')
        I('s_endpgm')
        for t in self.ool: p.raw(t)

    def trbase(self, dst, lane, kind, t0, t1):
        I = self.I
        I(f'v_bfe_u32 v{t0}, v{lane}, 4, 1')
        I(f'v_and_b32 v{t1}, 1, v{lane}')
        if kind == 'std':
            I(f'v_lshl_add_u32 v{t0}, v{t0}, 1, v{t1}')
        else:
            I(f'v_lshl_add_u32 v{t0}, v{t1}, 1, v{t0}')
        I(f'v_bfe_u32 v{t1}, v{lane}, 1, 1')
        I(f'v_lshl_add_u32 v{t0}, v{t0}, 1, v{t1}')
        I(f'v_bfe_u32 v{t1}, v{lane}, 2, 2')
        I(f'v_lshl_add_u32 v{t0}, v{t1}, 3, v{t0}')
        I(f'v_lshrrev_b32 v{t1}, 5, v{lane}')
        I(f'v_lshl_add_u32 v{t0}, v{t1}, 7, v{t0}')
        I(f'v_lshlrev_b32 v{dst}, 3, v{t0}')

    def cprologue(self):
        p = self.p; I = self.I
        I('s_load_dwordx2 s[96:97], s[0:1], 0')
        I('s_load_dwordx2 s[8:9], s[0:1], 64')
        I(f's_mov_b32 s98, {S*D*2:#x}'); I('s_mov_b32 s99, 0x20000')
        I(f's_mov_b32 s10, {S*D*2:#x}'); I('s_mov_b32 s11, 0x20000')
        I('s_setprio 2')
        I(f's_lshl_b32 s{sRT}, s{sRB}, 2')
        I(f's_lshr_b32 s{sT0}, s{sJ}, 3'); I(f's_lshl_b32 s{sT0}, s{sT0}, 1')
        I(f's_and_b32 s{sT1}, s{sW}, 1'); I(f's_add_u32 s{sT0}, s{sT0}, s{sT1}')
        I(f's_add_u32 s{sRT2}, s{sRT}, s{sT0}')
        I(f's_add_u32 s{sRT}, s{sRT}, s{sW}')
        I(f's_lshr_b32 s{sT2}, s{sW}, 1')
        I(f's_and_b32 s{sT3}, s{sJ}, 7'); I(f's_lshl_b32 s{sCT}, s{sT3}, 1'); I(f's_add_u32 s{sCT}, s{sCT}, s{sT2}')
        I(f's_lshl_b32 s{sT3}, s{sRT}, 15'); I(f's_lshl_b32 s{sT4}, s{sW}, 15')
        for f in range(16): I(f'v_xor_b32 v{ACC+f}, {f*16}, v{vL0}')
        p.wait_hard(lg=0)
        self.ts(0)
        for i in range(32):
            if i % 4 == 0:
                I(f's_add_u32 m0, s{sT4}, {i*1024}')
                if i: I(f's_add_u32 s{sT3}, s{sT3}, 4096')
            I(f'buffer_load_dwordx4 v{ACC+(i&15)}, {XS}, s{sT3} offen offset:{(i%4)*1024} lds')
        t0, t1, t2 = TMP, TMP + 1, TMP + 2
        I(f'v_and_b32 v{t1}, 31, v0')
        I(f'v_lshrrev_b32 v{t2}, 5, v0')
        I(f'v_lshlrev_b32 v{t0}, 10, v{t1}'); I(f'v_lshl_add_u32 v{t0}, v{t2}, 5, v{t0}')
        I(f's_lshl_b32 s{sT3}, s{sRT2}, 15'); I(f's_lshl_b32 s{sT5}, s{sCT}, 6'); I(f's_add_u32 s{sT3}, s{sT3}, s{sT5}')
        I(f'buffer_load_dwordx4 {vr(RES,4)}, v{t0}, {XS}, s{sT3} offen')
        I(f'buffer_load_dwordx4 {vr(RES+4,4)}, v{t0}, {XS}, s{sT3} offen offset:16')
        def lin(dst, base, terms):
            first = True
            for sreg, mul in terms:
                tgt = dst if first else sT5
                I(f's_mul_i32 s{tgt}, s{sreg}, {mul}')
                if not first: I(f's_add_u32 s{dst}, s{dst}, s{sT5}')
                first = False
            I(f's_add_u32 s{dst}, s{dst}, {base:#x}')
        B = LB0
        lin(sKVR, B + KVP, [(sJ, 4 * 16 * KVS), (sW, 16 * KVS)])
        lin(sKVW, B + KVP, [(sJ, 4 * 16 * KVS), (sW, 32 * KVS), (sRB, KVS)])
        lin(sOFW, B + OF, [(sRT, 32768), (sJ, 2048)])
        lin(sOFR, B + OF, [(sRT2, 32768), (sT2, 16384)])
        lin(sX1W, B + X1F, [(sRT2, 32768), (sCT, 2048)])
        lin(sST1W, B + ST1, [(sRT2, 4096), (sCT, 256)])
        lin(sX1R, B + X1F, [(sRT, 32768)]); lin(sST1R, B + ST1, [(sRT, 4096)])
        lin(sHFW, B + HF, [(sRT, 86 * 1024), (sJ, 1024)])
        lin(sHFR, B + HF, [(sRT2, 86 * 1024), (sT2, 43 * 1024)])
        lin(sXNW, B + LBS + XIN, [(sRT2, 32768), (sCT, 2048)])
        lin(sSTNW, B + LBS + STIN, [(sRT2, 4096), (sCT, 256)])
        fk = lambda kind: FLG + kind * 4 * FL
        lin(sFOCW, fk(K_OC), [(sRB, 8192), (sW, FL), (sJ, 4)])
        lin(sFOCR, fk(K_OC), [(sRB, 8192), (sT0, FL), (sT2, 32)])
        lin(sFX1W, fk(K_X1), [(sRB, 8192), (sT0, FL), (sCT, 4)])
        lin(sFX1R, fk(K_X1), [(sRB, 8192), (sW, FL)])
        lin(sFHCW, fk(K_HC), [(sRB, 8192), (sW, FL), (sJ, 4)])
        lin(sFHCR, fk(K_HC), [(sRB, 8192), (sT0, FL)])
        lin(sFXW, fk(K_XC), [(sRB, 8192), (sT0, FL), (sCT, 4)])
        lin(sFXR, fk(K_XC), [(sRB, 8192), (sW, FL)])
        lin(sFAR, FLG + F_AR, [(sJ, 8192)])
        lin(sFARW, FLG + F_AR, [(sJ, 8192), (sW, FL)])
        I(f's_mov_b32 s{sHALF}, 0'); I(f's_mov_b32 s{sHALF+1}, -1')
        I(f's_mov_b32 s{sONES}, 0x3f803f80'); I(f's_mov_b32 s{sSELLO}, 0x3f80'); I(f's_mov_b32 s{sSELHI}, 0x3f800000')
        I(f's_mov_b32 s{sMASKHI}, 0xffff0000')
        t3 = TMP + 3
        I(f'v_lshlrev_b32 v{vL8}, 3, v0'); I(f'v_add_u32 v{vL2}, 0x20000, v{vL0}')
        I(f'v_mov_b32 v{t3}, 0x80000000')
        I(f'v_mul_u32_u24 v{vAR}, 320, v{t2}')
        I(f'v_lshl_add_u32 v{vAR}, v{t1}, 4, v{vAR}')
        I(f'v_cmp_gt_u32 vcc, 20, v{t1}')
        I(f'v_cndmask_b32 v{vAR}, v{t3}, v{vAR}, vcc')
        I(f'v_min_u32 v{vKVA}, 16, v{t1}')
        I(f'v_lshl_add_u32 v{vKVA}, v{t2}, 5, v{vKVA}')
        I(f'v_lshlrev_b32 v{vKVA}, 4, v{vKVA}')
        I(f'v_add_u32 v{vKVA}, {L_KVA}, v{vKVA}')
        I(f'v_lshrrev_b32 v{vPH}, 1, v{t1}'); I(f'v_and_b32 v{vPH}, 3, v{vPH}')
        I(f'v_lshlrev_b32 v{t3}, 1, v{t2}'); I(f'v_xor_b32 v{vPH}, v{vPH}, v{t3}')
        I(f'v_lshlrev_b32 v{vPH}, 4, v{vPH}')
        I(f'v_lshl_add_u32 v{vPH}, v{t1}, 6, v{vPH}')
        I(f's_lshl_b32 s{sT3}, s{sW}, 11'); I(f's_add_u32 s{sT3}, s{sT3}, {L_SCRT}')
        I(f'v_add_u32 v{vPH}, s{sT3}, v{vPH}')
        I(f'v_lshlrev_b32 v{vEXT}, 3, v{t1}'); I(f'v_add_u32 v{vEXT}, {RESV}, v{vEXT}')
        I(f'v_mov_b32 v{BEXT+2}, 0'); I(f'v_mov_b32 v{BEXT+3}, 0'); I(f'v_mov_b32 v{vONE}, 1')
        I(f'v_and_b32 v{vFO}, 15, v0'); I(f'v_lshlrev_b32 v{vFO}, 2, v{vFO}')
        va = ACC + 16
        I(f'v_and_b32 v{va}, 15, v0'); I(f'v_xor_b32 v{va}, v{va}, v{t3}'); I(f'v_lshlrev_b32 v{va}, 4, v{va}')
        I(f'v_lshl_add_u32 v{va}, v{t1}, 10, v{va}'); I(f'v_add_u32 v{va}, s{sT4}, v{va}')
        bbs = [0, 1, 4, 5, 8, 9, 12, 13]
        for q, bb in enumerate(bbs[1:]): I(f'v_xor_b32 v{va+1+q}, {bb*16}, v{va}')
        self.trbase(vT0, 0, 'std', t0, t1)
        I(f'v_add_u32 v{vT1}, 0x10000, v{vT0}')
        self.trbase(vHS, 0, 'hs', t0, t1)
        self.run(self.kvaddr_ops())
        ST = ACC + 48
        for i in range(4): I(f'v_mov_b32 v{ST+i}, 0')
        p.wait_hard(vm=2)
        for ks in range(32):
            c = 4 * (ks >> 1) + (ks & 1)
            I(f'ds_read_b128 {vr(XB+4*ks,4)}, v{va+bbs.index(c & 15)} offset:{(c>>4)*256}')
            if ks in (14, 21, 28): p.wait(lg=8)
        self.barrier()
        for r in range(128):
            I(f'v_dot2c_f32_bf16 v{ST+2*(r&1)}, s{sONES}, v{XB+r}')
            I(f'v_dot2c_f32_bf16 v{ST+1+2*(r&1)}, v{XB+r}, v{XB+r}')
        I(f'v_add_f32 v{ST}, v{ST}, v{ST+2}'); I(f'v_add_f32 v{ST+1}, v{ST+1}, v{ST+3}')
        self.run(self.stats_fin(ST, 1))
        self.bar()
        self.ts(1)
        self.kvloop([], {})
        p.wait(vm=0)

    def kvloop(self, fill, at):
        I = self.I
        aK, aV = ACC, ACC + 16
        steps = []
        for ks in range(32):
            steps.append((aK, (lambda d, ks=ks: self.rdstrip(d, 0, ks)), XB + 4 * ks, ks == 0))
            steps.append((aV, (lambda d, ks=ks: self.rdstrip(d, 8, ks)), XB + 4 * ks, ks == 0))
        steps.append((aK, (lambda d: I(f'ds_read_b64 {vr(d,2)}, v{vEXT} offset:0')), BEXT, False))
        steps.append((aV, (lambda d: I(f'ds_read_b64 {vr(d,2)}, v{vEXT} offset:256')), BEXT, False))
        at.setdefault(BE, []).append(self.bar)
        at.setdefault(64, []).append(self.barrier)
        at.setdefault(65, []).append(lambda: self.rdaphi(AF + 8))
        self.gemm(steps, fill=fill, fill_per=2, at=at)

    def body(self, fast):
        p = self.p; I = self.I; x = self.x
        p.label('L_body' + x)
        p.lg = [(-1, [f'v{AF+8+q}' for q in range(4)]), (-2, [f'v{AF+12+q}' for q in range(4)])]
        self.ts(2)
        aK, aV = ACC, ACC + 16
        P0, P1 = ACC + 32, ACC + 48
        self.feat(aK, P0, P1, AF + 8)
        for i in range(0, 16, 2):
            I(f'v_pk_mul_f32 {vr(aV+i,2)}, {vr(aV+i,2)}, {vr(CON+2,2)} op_sel_hi:[1,0]')
        for i in range(8): I(f'v_cvt_pk_bf16_f32 v{aV+i}, v{aV+2*i}, v{aV+2*i+1}')
        for i in range(4): I(f'v_mov_b32 v{aV+8+i}, s{sONES}')
        I(f'v_cndmask_b32 v{aV+12}, 0, 48, s[{sHALF}:{sHALF+1}]')
        I(f'v_xor_b32 v{aV+12}, v{aV+12}, v{vPH}')
        I(f'v_xor_b32 v{aV+13}, 32, v{aV+12}')
        I(f'v_xor_b32 v{aV+14}, 16, v{vPH}')
        I(f'ds_write_b128 v{aV+12}, {vr(aV,4)} offset:16384')
        I(f'ds_write_b128 v{aV+12}, {vr(aV+4,4)} offset:24576')
        I(f'ds_write_b128 v{aV+13}, {vr(aV+8,4)} offset:16384')
        I(f'ds_write_b128 v{aV+13}, {vr(aV+8,4)} offset:24576')
        self.softmax2(P0, P1)
        I(f'ds_write_b128 v{vPH}, {vr(P0,4)}'); I(f'ds_write_b128 v{aV+14}, {vr(P0+4,4)}')
        I(f'ds_write_b128 v{vPH}, {vr(P1,4)} offset:8192'); I(f'ds_write_b128 v{aV+14}, {vr(P1+4,4)} offset:8192')
        self.barrier()
        self.ts(3)
        I(f's_cmp_ge_u32 s{sW}, 2'); p.branch(f's_cbranch_scc1 L_nokv{x}')
        A = ACC; Bq = ACC + 32; Dk = AF
        def mm(k): I(f'v_mfma_f32_32x32x16_bf16 {vr(Dk,16)}, {vr(A+4*k,4)}, {vr(Bq+4*k,4)}, {"0" if k==0 else vr(Dk,16)}')
        for ks in range(8):
            I(f'ds_read_b64_tr_b16 {vr(A+4*ks,2)}, v{vOWN} offset:{ks*1024}')
            I(f'ds_read_b64_tr_b16 {vr(A+4*ks+2,2)}, v{vOTH} offset:{ks*1024+256}')
            I(f'ds_read_b64_tr_b16 {vr(Bq+4*ks,2)}, v{vX0} offset:{16384+ks*1024}')
            I(f'ds_read_b64_tr_b16 {vr(Bq+4*ks+2,2)}, v{vX1} offset:{16384+ks*1024+256}')
            if ks >= 2: mm(ks - 2)
        mm(6); mm(7)
        I(f's_add_u32 s{sT0}, s{sKVW}, {16*KVS}')
        for i in range(4): I(f'v_cvt_pk_bf16_f32 v{Dk+i}, v{Dk+2*i}, v{Dk+2*i+1}')
        I(f'buffer_store_dwordx4 {vr(Dk,4)}, v{vAR}, {WS}, s{sKVW} offen sc1')
        for i in range(4, 8): I(f'v_cvt_pk_bf16_f32 v{Dk+i}, v{Dk+2*i}, v{Dk+2*i+1}')
        I(f'buffer_store_dwordx4 {vr(Dk+4,4)}, v{vAR}, {WS}, s{sT0} offen sc1')
        p.wait(vm=0)
        I('s_mov_b64 exec, 1')
        I(f'buffer_atomic_add v{vONE}, off, {WS}, s{sFARW} sc1')
        I('s_mov_b64 exec, -1')
        p.label(f'L_nokv{x}')
        p.vm = []
        aQ = ACC
        steps = [(aQ, (lambda d, ks=ks: self.rdstrip(d, 16, ks)), XB + 4 * ks, ks == 0) for ks in range(32)]
        self.gemm(steps)
        self.barrier()
        I(f'ds_read_b64 {vr(AF,2)}, v{vEXT} offset:512')
        self.rdaphi(AF + 8)
        if fast and not FORCESLOW:
            I(f'v_mov_b32 v{TMP}, {L_MODE}')
            I(f'ds_read_b32 v{TMP}, v{TMP}')
            I(f'v_readfirstlane_b32 s{sPOLL}, v{TMP}')
            I(f's_cmp_eq_u32 s{sPOLL}, 0')
            p.branch('s_cbranch_scc1 L_afterqs')
        p.wait(lg=0)
        p.label('L_afterq' + x)
        I(f'v_mfma_f32_32x32x16_bf16 {vr(aQ,16)}, {vr(AF,4)}, {vr(BEXT,4)}, {vr(aQ,16)}')
        self.feat(aQ, P0, P1, AF + 8)
        self.softmax2(P0, P1)
        R = XB + 64
        for i in range(8): I(f'v_mov_b32 v{R+i}, 0')
        I(f's_lshl_b32 s{sT2}, s{sW}, 10')
        I(f'v_add_u32 v{TMP}, s{sT2}, v{vL2}')
        I(f's_add_u32 s{sT1}, s{sKVR}, 4096'); I(f's_add_u32 s{sT0}, s{sKVR}, 8192')
        self.ts(4)
        I(f's_cmp_lg_u32 s{sW}, 3'); p.branch(f's_cbranch_scc1 L_arok{x}')
        I(f'v_lshlrev_b32 v{TMP+1}, 3, v{vL0}')
        I(f's_mov_b32 s{sITER}, 0x8000')
        I('s_mov_b64 exec, 3')
        p.label(f'L_arp{x}')
        I(f'buffer_load_dword v{vP}, v{TMP+1}, {WS}, s{sFAR} offen sc1')
        I(f's_sub_u32 s{sITER}, s{sITER}, 1')
        p.wait(vm=0)
        I(f'v_cmp_gt_u32 vcc, 16, v{vP}')
        p.xbranch(f's_cbranch_vccz L_arq{x}')
        if SLEEP: I(f's_sleep {SLEEP}')
        p.xbranch(f's_cbranch_scc0 L_arp{x}')
        p.xlabel(f'L_arq{x}')
        I('s_mov_b64 exec, -1')
        p.label(f'L_arok{x}')
        self.bar()
        self.ts(5)
        for b in range(16):
            off = b * KVS; q = off // 4096
            I(f'buffer_load_dwordx4 {vr(XB+4*b,4)}, v{vAR}, {WS}, s{[sKVR,sT1,sT0][q]} offen offset:{off-q*4096} sc1')
        for b in range(16):
            for i in range(4):
                I(f'v_dot2c_f32_bf16 v{R+2*i}, s{sSELLO}, v{XB+4*b+i}')
                I(f'v_dot2c_f32_bf16 v{R+2*i+1}, s{sSELHI}, v{XB+4*b+i}')
        for i in range(4): I(f'v_cvt_pk_bf16_f32 v{R+i}, v{R+2*i}, v{R+2*i+1}')
        I(f'ds_write_b128 v{TMP}, {vr(R,4)} offset:{L_KVA-131072}')
        self.barrier()
        self.ts(6)
        for q in (0, 2, 1, 3): I(f'ds_read_b128 {vr(AF+4*q,4)}, v{vKVA} offset:{q*1024}')
        O0, O1 = ACC, ACC + 16
        I(f'v_mfma_f32_32x32x16_bf16 {vr(O0,16)}, {vr(AF,4)}, {vr(P0,4)}, 0')
        I(f'v_mfma_f32_32x32x16_bf16 {vr(O1,16)}, {vr(AF+8,4)}, {vr(P1,4)}, 0')
        I(f'v_mfma_f32_32x32x16_bf16 {vr(O0,16)}, {vr(AF+4,4)}, {vr(P0+4,4)}, {vr(O0,16)}')
        I(f'v_mfma_f32_32x32x16_bf16 {vr(O1,16)}, {vr(AF+12,4)}, {vr(P1+4,4)}, {vr(O1,16)}')
        self.setown(16 * G, 32768)
        self.setex(L_EX2)
        I(f'v_and_b32 v{TMP}, 28, v{vFO}')
        for O in (O0, O1):
            I(f'v_add_f32 v{O+8}, {f32(1e-6)}, v{O+8}')
            I(f'v_rcp_f32 v{O+8}, v{O+8}')
            for i in range(0, 8, 2): I(f'v_pk_mul_f32 {vr(O+i,2)}, {vr(O+i,2)}, {vr(O+8,2)} op_sel_hi:[1,0]')
            for i in range(4): I(f'v_cvt_pk_bf16_f32 v{O+i}, v{O+2*i}, v{O+2*i+1}')
            I(f'buffer_store_dwordx4 {vr(O,4)}, v{vL0}, {WS}, s{sOFW} offen offset:{0 if O==O0 else 1024}{self.sc}')
        own, oth = ACC + 32, ACC + 48
        self.res_init(own)
        self.signal(sFOCW)
        self.ts(7)
        self.poll(sFOCR, 0, TMP)
        self.ts(8)
        self.loadfrags(sOFR, [(XB + 4 * k, k) for k in range(NUP2)])
        steps = []
        for g in range(16):
            steps.append((own, (lambda d, o=g * 2048: self.rdtr(d, vOWN, o)), XB + 4 * g, False))
            steps.append((oth, (lambda d, o=g * 2048: self.rdtr(d, vOTH, o)), XB + 4 * g, g == 0))
        self.gemm(steps, at=self.later(sOFR, 16, NUP2))
        self.ts(9)
        self.exchange(own, oth, ACC)
        self.xstore(sX1W, sST1W)
        self.signal(sFX1W)
        self.ts(10)
        self.poll(sFX1R)
        self.ts(11)
        ST = ACC + 48
        self.loadfrags(sX1R, [(XB + 4 * k, k) for k in range(4)])
        self.loadstats(ST, sST1R)
        self.loadfrags(sX1R, [(XB + 4 * k, k) for k in range(4, NUP)])
        def unit(u, region, fill, fill_per, at):
            aG, aU = ACC + 32 * (u & 1), ACC + 32 * (u & 1) + 16
            steps = []
            for ks in range(32):
                steps.append((aG, (lambda d, ks=ks: self.rdstrip(d, region, ks)), XB + 4 * ks, ks == 0))
                steps.append((aU, (lambda d, ks=ks: self.rdstrip(d, region + 8, ks)), XB + 4 * ks, ks == 0))
            steps.append((aG, (lambda d: I(f'ds_read_b64 {vr(d,2)}, v{vEXT} offset:{1024+u*512}')), BEXT, False))
            steps.append((aU, (lambda d: I(f'ds_read_b64 {vr(d,2)}, v{vEXT} offset:{1024+u*512+256}')), BEXT, False))
            at.setdefault(64, []).append(self.barrier)
            self.gemm(steps, fill=fill, fill_per=fill_per, at=at)
        ids = []
        def hstore(u):
            Gr = ACC + 32 * (u & 1)
            def f():
                I(f's_add_u32 s{sT2}, s{sHFW}, {16*u*1024}'); I(f's_add_u32 s{sT3}, s{sHFW}, {(43+16*u)*1024}')
                ids.clear()
                ids.append(I(f'buffer_store_dwordx4 {vr(Gr,4)}, v{vL0}, {WS}, s{sT2} offen{self.sc}'))
                ids.append(I(f'buffer_store_dwordx4 {vr(Gr+4,4)}, v{vL0}, {WS}, s{sT3} offen{self.sc}'))
            return f
        def gel(u, packed):
            return self.gelu_ops(ACC + 32 * (u & 1), ACC + 32 * (u & 1) + 16, packed) + [hstore(u)]
        def sig(n):
            def f():
                assert len(ids) == 2
                self.signal(sFHCW, (n * 4 * FL,), ids); ids.clear()
            return f
        at = self.later(sX1R, 32, NUP)
        at.setdefault(BM, []).append(self.bar)
        unit(0, 0, [lambda: None] * 16 + self.stats_red(ST) + self.stats_fin(ST, 3), 2, at)
        self.ts(12)
        unit(1, 16, gel(0, False), FP, {BU1: [self.bar], 65: [sig(0)]})
        self.ts(13)
        I(f's_cmp_eq_u32 s{sHEAVY}, 0'); p.branch(f's_cbranch_scc1 L_light{x}')
        snap = p.snapshot()
        P0I = env('P0I', 24)
        at = {B7B: [self.bar], P0I: [lambda: self.poll_issue(sFHCR, 0)], P0I + 6: [lambda: self.poll_check(sFHCR, 0)], 65: [sig(1)]}
        for k in range(16):
            at.setdefault(max(P0I + 6 + 2 * k, 2 * k + 2), []).append(lambda k=k: self.loadfrags(sHFR, [(XB + 4 * k, k)]))
        unit(2, 0, gel(1, False), FP, at)
        self.poll_issue(sFHCR, 4 * FL)
        g2 = gel(2, True)
        self.run(g2[:40])
        self.poll_check(sFHCR, 4 * FL)
        self.loadfrags(sHFR, [(XB + 4 * k, k) for k in range(16, 24)])
        self.run(g2[40:])
        self.loadfrags(sHFR, [(XB + 4 * k, k) for k in range(24, 32)])
        snap2 = p.snapshot(); ids2 = list(ids)
        p.branch(f's_branch L_p3done{x}')
        p.label(f'L_light{x}')
        p.restore(snap)
        self.bar(); self.bar()
        self.run(gel(1, True))
        self.signal(sFHCW, (4 * FL,))
        self.poll(sFHCR, 0)
        self.loadfrags(sHFR, [(XB + 4 * k, k) for k in range(16)])
        self.poll(sFHCR, 4 * FL)
        self.loadfrags(sHFR, [(XB + 4 * k, k) for k in range(16, 32)])
        p.wait(vm=0)
        p.label(f'L_p3done{x}')
        p.restore(snap2)
        self.ts(14)
        self.res_init(own)
        self.setex(L_EX4)
        steps = []; at = {}
        cur = None
        for g in range(43):
            a = w4_slot(g) * G
            base = a // 65536 * 65536
            if base != cur:
                cur = base
                at.setdefault(('rd', 2 * g), []).append(lambda b=base: self.setown(b, 2048))
            steps.append((own, (lambda d, o=a - base: self.rdtr(d, vOWN, o)), XB + 4 * (g % 32), False))
            steps.append((oth, (lambda d, o=a - base: self.rdtr(d, vOTH, o)), XB + 4 * (g % 32), g == 0))
        at.setdefault(env('S2AT', 6), []).append(lambda: self.signal(sFHCW, (8 * FL,), ids2))
        P2I = env('P2I', 30)
        at.setdefault(P2I, []).append(lambda: self.poll_issue(sFHCR, 8 * FL))
        at.setdefault(P2I + 6, []).append(lambda: self.poll_check(sFHCR, 8 * FL))
        for k in range(32, 43):
            at.setdefault(P2I + 6 + (k - 32), []).append(lambda k=k: self.loadfrags(sHFR, [(XB + 4 * (k % 32), k)]))
        at.setdefault(env('B10', 20), []).append(self.bar)
        at.setdefault(env('B11', 64), []).append(self.bar)
        self.gemm(steps, at=at)
        self.ts(15)
        self.exchange(own, oth, ACC)
        I(f's_cmp_eq_u32 s{sLAYER}, 1'); p.branch(f's_cbranch_scc1 L_final{x}')
        self.xstore(sXNW, sSTNW)
        for s in LAY_A: I(f's_add_u32 s{s}, s{s}, {LBS:#x}')
        for s in LAY_F: I(f's_add_u32 s{s}, s{s}, {FLS}')
        I(f's_add_u32 s{sFAR}, s{sFAR}, 256'); I(f's_add_u32 s{sFARW}, s{sFARW}, 256')
        I(f's_mov_b32 s{sLAYER}, 1')
        I(f's_add_u32 s{sXNW}, s{sX1R}, {(XIN - X1F) & 0xffffffff:#x}'); I(f's_add_u32 s{sSTNW}, s{sST1R}, {(STIN - ST1) & 0xffffffff:#x}')
        self.signal(sFXW)
        self.ts(16)
        self.ts_save()
        self.ts(0)
        self.poll(sFXR)
        self.loadfrags(sXNW, [(XB + 4 * k, k) for k in range(4)])
        self.loadstats(ST, sSTNW)
        self.loadfrags(sXNW, [(XB + 4 * k, k) for k in range(4, NUP)])
        self.bar()
        self.ts(1)
        self.kvloop(self.kvaddr_ops() + self.stats_red(ST) + self.stats_fin(ST, 1), self.later(sXNW, 32, NUP))
        p.wait(vm=0)
        p.branch(f's_branch L_body{x}')
        p.label(f'L_final{x}')
        p.vm = []; p.lg = []
        t0, t1, t2 = TMP, TMP + 1, TMP + 2
        I(f'v_lshrrev_b32 v{t0}, 4, v{vL0}'); I(f'v_and_b32 v{t1}, 31, v{t0}'); I(f'v_lshrrev_b32 v{t2}, 5, v{t0}')
        I(f'v_lshlrev_b32 v{t0}, 10, v{t1}'); I(f'v_lshl_add_u32 v{t0}, v{t2}, 5, v{t0}')
        I(f's_lshl_b32 s{sT0}, s{sRT2}, 15'); I(f's_lshl_b32 s{sT1}, s{sCT}, 6'); I(f's_add_u32 s{sT0}, s{sT0}, s{sT1}')
        I(f'buffer_store_dwordx4 {vr(RES,4)}, v{t0}, {OUT}, s{sT0} offen')
        I(f'buffer_store_dwordx4 {vr(RES+4,4)}, v{t0}, {OUT}, s{sT0} offen offset:16')
        if TS:
            p.wait(vm=0)
            self.ts(16)
            self.ts_flush(vP, TMP + 4, vL0)
        if DBGT == 2:
            p.wait(vm=0)
            p.label('L_dw' + x)
            I('s_memrealtime s[64:65]'); p.wait_hard(lg=0)
            I('s_sub_u32 s64, s64, s62'); I('s_cmp_lt_u32 s64, 9000')
            p.branch('s_cbranch_scc1 L_dw' + x)
        if DBGT == 1:
            p.wait(vm=0)
            I('s_memrealtime s[64:65]'); p.wait_hard(lg=0)
            I('s_not_b32 s62, s62')
            I('s_mov_b64 exec, 1')
            I(f'v_mov_b32 v{t0}, 0'); I(f'v_mov_b32 v{t1}, s62'); I(f'v_mov_b32 v{t2}, s64')
            I(f'global_atomic_umax v{t0}, v{t1}, s[60:61] offset:4 sc1')
            I(f'global_atomic_umax v{t0}, v{t2}, s[60:61] offset:8 sc1')
            p.wait(vm=0)
        I('s_endpgm')

    def colsum(self, w0, nw, strip, ext):
        p = self.p; I = self.I
        E = self.lab('cse'); L = self.lab('csl')
        I(f's_sub_u32 s{sA}, s{sW}, {w0}'); I(f's_cmp_ge_u32 s{sA}, {nw}'); p.branch(f's_cbranch_scc1 {E}')
        I(f's_lshl_b32 s{sB}, s{sA}, 15'); I(f's_add_u32 s{sB}, s{sB}, {strip*G}')
        I(f'v_add_u32 v{hB}, s{sB}, v{hT0}')
        I(f'v_mov_b32 v{hA0}, 0'); I(f'v_mov_b32 v{hA1}, 0')
        offs = [0, 512, 2048, 2560]
        p.wait(lg=0)
        for q in range(4): self.rdtr(hR + 4 * q, hB, offs[q])
        I(f's_mov_b32 s{sM}, 8')
        p.label(L)
        for q in range(4):
            p.wait_hard(lg=6); p.lg = []
            for e in range(4): I(f'v_dot2c_f32_bf16 v{hA0+(e&1)}, s{sONES}, v{hR+4*q+e}')
            self.rdtr(hR + 4 * q, hB, 4096 + offs[q]); p.lg = []
        I(f'v_add_u32 v{hB}, 4096, v{hB}')
        I(f's_sub_u32 s{sM}, s{sM}, 1'); I(f's_cmp_lg_u32 s{sM}, 0')
        p.branch(f's_cbranch_scc1 {L}')
        p.wait_hard(lg=0)
        I(f'v_add_f32 v{hA0}, v{hA0}, v{hA1}')
        I(f'v_mov_b32 v{hA1}, v{hA0}')
        I(f'v_permlane32_swap_b32 v{hA1}, v{hA0}')
        I(f'v_add_f32 v{hA0}, v{hA0}, v{hA1}')
        I(f'v_cvt_pk_bf16_f32 v{hA1}, v{hA0}, v{hA0}'); I(f'v_and_b32 v{hA1}, 0xffff0000, v{hA1}'); I(f'v_sub_f32 v{hA1}, v{hA0}, v{hA1}')
        I(f'v_cvt_pk_bf16_f32 v{hR}, v{hA0}, v{hA1}'); I(f'v_mov_b32 v{hR+1}, v{hR}')
        I(f'v_and_b32 v{hB}, 31, v0'); I(f'v_lshlrev_b32 v{hB}, 3, v{hB}')
        I(f's_lshl_b32 s{sB}, s{sA}, 8'); I(f's_add_u32 s{sB}, s{sB}, {ext}')
        I(f'v_add_u32 v{hB}, s{sB}, v{hB}')
        I(f'ds_write_b64 v{hB}, {vr(hR,2)}')
        p.wait(lg=0)
        p.label(E)
    def l0(self, fn):
        p = self.p; E = self.lab('l0e')
        self.I(f's_cmp_lg_u32 s{sLAYER}, 0'); p.branch(f's_cbranch_scc1 {E}')
        fn()
        p.label(E)
    def ldstrip(self, srd, voff, stride, col_s, dst, lds=None):
        I = self.I
        for q in range(8):
            s = col_s
            if q:
                s = sA + (q & 1)
                I(f's_add_u32 s{s}, s{col_s}, {q*64*stride}')
            if lds is None:
                I(f'buffer_load_dwordx4 {vr(dst+4*q,4)}, v{voff}, {sq(srd)}, s{s} offen')
            else:
                I(f's_add_u32 m0, s{sM+1}, {lds*G+q*4096}')
                I(f'buffer_load_dwordx4 v{voff}, {sq(srd)}, s{s} offen lds')
    def wr(self, src, n, grp):
        for q in range(n):
            a = grp * G + q * 4096
            self.I(f'ds_write_b128 v{hL0 + a // 65536}, {vr(src+4*q,4)} offset:{a%65536}')
            if q == 13: self.p.wait_hard(lg=8)
    def w4dma(self, g0, g1):
        I = self.I
        for g in range(g0, g1):
            s = sA + (g & 1)
            I(f's_add_u32 s{s}, s{self.sW4}, {g*32768}')
            I(f's_add_u32 m0, s{sM+1}, {w4_slot(g)*G}')
            I(f'buffer_load_dwordx4 v{hG2}, {sq(hWD)}, s{s} offen lds')
    def helper(self):
        p = self.p; I = self.I
        p.vm = []; p.lg = []
        bar = self.bar
        def hbar(): p.wait_hard(lg=0); I('s_barrier')
        I(f's_load_dwordx4 {sq(hW1)}, s[0:1], 8'); I(f's_load_dwordx4 {sq(hWG)}, s[0:1], 40')
        I(f's_load_dwordx2 s[{hWO}:{hWO+1}], s[0:1], 24'); I(f's_load_dwordx2 s[{hWD}:{hWD+1}], s[0:1], 56')
        I(f's_load_dwordx2 s[{sDB}:{sDB+1}], s[0:1], 72')
        sK, sU, sW2, sW4, sPF = 53, 54, 55, 55, 57
        self.sW4 = sW4
        sH1 = sM + 1
        I(f's_sub_u32 s{sH}, s{sW}, 4'); I(f's_and_b32 s{sCC}, s{sJ}, 7')
        I(f's_lshl_b32 s{sH1}, s{sH}, 10')
        I(f'v_lshrrev_b32 v{hB}, 2, v0'); I(f'v_and_b32 v{hA0}, 3, v0'); I(f'v_lshlrev_b32 v{hA0}, 4, v{hA0}')
        I(f'v_mul_u32_u24 v{hG1}, 3072, v{hB}'); I(f'v_add_u32 v{hG1}, v{hG1}, v{hA0}')
        I(f's_mul_i32 s{sK}, s{sH}, {16*3072}'); I(f's_lshl_b32 s{sA}, s{sJ}, 6'); I(f's_add_u32 s{sK}, s{sK}, s{sA}')
        I(f's_add_u32 s{sU}, s{sK}, 1024')
        p.wait_hard(lg=0)
        I(f's_mov_b32 s{hPH}, s{hW1+2}'); I(f's_mov_b32 s{hPH+1}, s{hW1+3}')
        I(f's_mov_b32 s{hWU}, s{hWG+2}'); I(f's_mov_b32 s{hWU+1}, s{hWG+3}')
        for srd, nb in ((hW1, 512 * 1536 * 2), (hPH, 32 * 512), (hWO, 512 * 512 * 2), (hWG, 512 * F * 2), (hWU, 512 * F * 2), (hWD, F * 512 * 2)):
            I(f's_mov_b32 s{srd+2}, {nb:#x}'); I(f's_mov_b32 s{srd+3}, 0x20000')
        self.ts(0)
        I(f's_cmp_lg_u32 s{sW}, 7'); p.branch('s_cbranch_scc1 L_h0')
        for i in range(4): I(f'v_mov_b32 v{hD+i}, 0')
        I(f's_lshl_b32 s{sA}, s{sRB}, 13'); I(f's_mul_i32 s{sB}, s{sJ}, 384'); I(f's_add_u32 s{sA}, s{sA}, s{sB}')
        I(f's_add_u32 s{sA}, s{sA}, {FLG:#x}')
        I(f's_lshl_b32 s{sB}, s{sJ}, 13'); I(f's_add_u32 s{sB}, s{sB}, {FLG+F_AR:#x}')
        I('s_mov_b32 exec_hi, 0'); I('s_mov_b32 exec_lo, 0xffffff')
        I(f'buffer_store_dwordx4 {vr(hD,4)}, v{vL0}, {WS}, s{sA} offen sc1')
        I('s_mov_b32 exec_lo, -1')
        I(f's_cmp_lg_u32 s{sRB}, 0'); p.branch('s_cbranch_scc1 L_h00')
        I(f'buffer_store_dwordx4 {vr(hD,4)}, v{vL0}, {WS}, s{sB} offen sc1')
        p.label('L_h00')
        I('s_mov_b64 exec, -1')
        I(f's_lshl_b32 s{sA}, s{sJ}, 10'); I(f's_mov_b32 m0, {L_PHIR}')
        I(f'buffer_load_dwordx4 v{vL0}, {sq(hPH)}, s{sA} offen lds')
        p.label('L_h0')
        p.vm = []
        self.ldstrip(hW1, hG1, 3072, sU, RW1)
        I(f's_add_u32 s{sU}, s{sK}, 2048')
        self.ldstrip(hW1, hG1, 3072, sU, RW1 + 32)
        I(f's_cmp_lg_u32 s{sW}, 7'); p.branch('s_cbranch_scc1 L_h1')
        I(f's_getreg_b32 s{sA}, hwreg(HW_REG_XCC_ID)')
        I(f's_and_b32 s{sA}, s{sA}, 15')
        I(f's_mul_i32 s{sB}, s{sA}, s{sA}'); I(f's_lshl_b32 s{sB}, s{sB}, 8'); I(f's_add_u32 s{sA}, s{sA}, s{sB}')
        I(f's_lshl_b32 s{sA}, s{sA}, 8'); I(f's_add_u32 s{sA}, s{sA}, 1')
        I(f's_lshl_b32 s{sXC}, s{sA}, 4')
        I(f'v_mov_b32 v{hD}, s{sA}'); I(f's_lshl_b32 s{sB}, s{sRB}, 4'); I(f'v_mov_b32 v{hD+1}, s{sB}')
        p._emit('s_waitcnt vmcnt(17)')
        I('s_mov_b64 exec, 1')
        snap = p.snapshot()
        I(f'global_atomic_add v{hD+1}, v{hD}, s[{sDB}:{sDB+1}] sc1')
        p.restore(snap)
        I('s_mov_b64 exec, -1')
        p.label('L_h1')
        self.ldstrip(hW1, hG1, 3072, sK, RW1 + 64)
        I(f'v_and_b32 v{hA1}, 7, v{hB}'); I(f'v_lshlrev_b32 v{hG2}, 10, v{hA1}')
        I(f'v_lshrrev_b32 v{hA1}, 5, v0'); I(f'v_lshl_add_u32 v{hG2}, v{hA1}, 6, v{hG2}'); I(f'v_add_u32 v{hG2}, v{hG2}, v{hA0}')
        I(f's_lshl_b32 s{sW2}, s{sH}, 13'); I(f's_lshl_b32 s{sA}, s{sCC}, 7'); I(f's_add_u32 s{sW2}, s{sW2}, s{sA}')
        for q in range(16):
            s = sW2
            if q:
                s = sA + (q & 1); I(f's_add_u32 s{s}, s{sW2}, {q*32768}')
            I(f'buffer_load_dwordx4 {vr(RW2+4*q,4)}, v{hG2}, {sq(hWO)}, s{s} offen')
        I(f'v_mul_u32_u24 v{hG3}, 2752, v{hB}'); I(f'v_add_u32 v{hG3}, v{hG3}, v{hA0}')
        I(f's_mul_i32 s{sK}, s{sH}, {16*2752}'); I(f's_lshl_b32 s{sA}, s{sJ}, 6'); I(f's_add_u32 s{sK}, s{sK}, s{sA}')
        I(f's_add_u32 s{sU}, s{sK}, 1024')
        self.ldstrip(hWG, hG3, 2752, sU, RW3)
        self.ldstrip(hWU, hG3, 2752, sU, RW3 + 32)
        I(f's_add_u32 s{sU}, s{sK}, 2048')
        I(f'v_add_u32 v{hL0}, s{sH1}, v{vL0}'); I(f'v_add_u32 v{hL1}, 0x10000, v{hL0}')
        self.trbase(hT0, 0, 'std', hA0, hA1)
        I(f's_mov_b32 s{sONES}, 0x3f803f80')
        I(f's_and_b32 s{sA}, s{sRB}, 1'); I(f's_lshl_b32 s{sA}, s{sA}, 1'); I(f's_lshr_b32 s{sB}, s{sJ}, 3'); I(f's_add_u32 s{sA}, s{sA}, s{sB}')
        I(f's_lshl_b32 s{sA}, s{sA}, 2'); I(f's_add_u32 s{sA}, s{sA}, s{sH}'); I(f's_mul_i32 s{sA}, s{sA}, 74'); I(f's_add_u32 s{sA}, s{sA}, 192')
        I(f's_lshl_b32 s{sPF}, s{sA}, 10'); I(f's_lshl_b32 s{sA}, s{sCC}, 7'); I(f's_add_u32 s{sPF}, s{sPF}, s{sA}')
        bar()
        self.wr(RW1, 16, 0)
        hbar()
        self.ts(1)
        self.wr(RW1 + 64, 8, 16)
        self.colsum(4, 2, 0, L_EXT1)
        I(f's_cmp_lg_u32 s{sW}, 7'); p.branch('s_cbranch_scc1 L_h2')
        I(f'v_bfe_u32 v{hA0}, v0, 1, 1'); I(f'v_bfe_u32 v{hA1}, v0, 4, 1'); I(f'v_lshl_add_u32 v{hA0}, v{hA1}, 1, v{hA0}')
        I(f'v_bfe_u32 v{hA1}, v0, 2, 2'); I(f'v_lshl_add_u32 v{hA0}, v{hA1}, 2, v{hA0}')
        I(f'v_lshrrev_b32 v{hA1}, 5, v0'); I(f'v_lshl_add_u32 v{hA0}, v{hA1}, 5, v{hA0}')
        I(f'v_lshlrev_b32 v{hA0}, 3, v{hA0}'); I(f'v_add_u32 v{hA0}, {L_PHIR}, v{hA0}')
        for hh in range(2):
            for t in range(2): I(f'ds_read_b64_tr_b16 {vr(hR+4*hh+2*t,2)}, v{hA0} offset:{hh*512+t*128}')
        I(f'v_bfe_u32 v{hA1}, v0, 2, 1'); I(f'v_mul_u32_u24 v{hA1}, 0x8000, v{hA1}'); I(f'v_lshl_or_b32 v{hA1}, v{hA1}, 16, v{hA1}')
        I(f'v_lshlrev_b32 v{hB}, 4, v0'); I(f'v_add_u32 v{hB}, {L_APHI}, v{hB}')
        for q in range(8): I(f'v_xor_b32 v{hR+q}, v{hR+q}, v{hA1}')
        I(f'ds_write_b128 v{hB}, {vr(hR,4)}'); I(f'ds_write_b128 v{hB}, {vr(hR+4,4)} offset:1024')
        p.wait(lg=0)
        p.label('L_h2')
        hbar()
        p.label('L_hbody')
        p.vm = []
        bar()
        self.ts(2)
        self.ldstrip(hWG, hG3, 2752, sK, None, 0)
        self.ldstrip(hWU, hG3, 2752, sK, None, 8)
        def shake():
            I(f's_cmp_lg_u32 s{sW}, 7'); p.branch('s_cbranch_scc1 L_h3')
            I(f's_mov_b32 s{sITER}, 0x4000'); I(f's_lshl_b32 s{sM}, s{sRB}, 4')
            p.label('L_hs')
            I(f's_load_dword s{sA}, s[{sDB}:{sDB+1}], s{sM} glc'); I(f's_load_dword s{sB}, s[{sDB}:{sDB+1}], 0 glc')
            I(f's_sub_u32 s{sITER}, s{sITER}, 1'); p.branch('s_cbranch_scc1 L_hs2')
            p.wait_hard(lg=0)
            I(f's_and_b32 s{sB}, s{sB}, s{sA}'); I(f's_bitcmp1_b32 s{sB}, 4')
            p.branch('s_cbranch_scc0 L_hs')
            p.label('L_hs2')
            p.wait_hard(lg=0)
            I(f's_cmp_eq_u32 s{sA}, s{sXC}'); I(f's_cselect_b32 s{sA}, 1, 0')
            I(f'v_mov_b32 v{hA0}, s{sA}'); I(f'v_mov_b32 v{hA1}, {L_MODE}')
            I(f'ds_write_b32 v{hA1}, v{hA0}')
            p.wait(lg=0)
            p.label('L_h3')
        self.l0(shake)
        bar()
        self.ts(3)
        self.l0(lambda: self.colsum(6, 1, 16, L_EXT1 + 512))
        bar()
        p._emit('s_waitcnt vmcnt(32)')
        self.wr(RW2, 16, 16)
        bar()
        hbar()
        self.ts(4)
        p.wait_hard(vm=0); bar()
        self.ts(5)
        self.wr(RW3, 16, 16)
        self.l0(lambda: self.colsum(4, 2, 0, L_EXT3))
        hbar()
        self.ts(6)
        def pf():
            I(f'v_lshlrev_b32 v{hB}, 10, v0')
            I(f's_add_u32 s{sA}, s{sPF}, {10*1024}')
            I(f'buffer_load_dword v{hD}, v{hB}, {sq(hWD)}, s{sPF} offen')
            I(f'buffer_load_dword v{hD+1}, v{hB}, {sq(hWD)}, s{sA} offen')
        self.w4dma(0, 6)
        if PFAT == 0: pf()
        bar()
        self.ts(7)
        I(f's_cmp_eq_u32 s{sHEAVY}, 0'); p.branch('s_cbranch_scc1 L_hlight')
        self.ldstrip(hWG, hG3, 2752, sU, None, 0)
        self.ldstrip(hWU, hG3, 2752, sU, None, 8)
        p.label('L_hlight')
        if PFAT == 1: pf()
        self.l0(lambda: self.colsum(6, 2, 16, L_EXT3 + 512))
        bar()
        p.wait_hard(vm=2 if PFAT == 1 else 0); bar()
        self.ts(8)
        self.w4dma(6, 22)
        def cs2():
            E = self.lab('nh')
            I(f's_cmp_eq_u32 s{sHEAVY}, 0'); p.branch(f's_cbranch_scc1 {E}')
            self.colsum(4, 2, 0, L_EXT3 + 1024)
            p.label(E)
        self.l0(cs2)
        bar()
        self.w4dma(22, 30)
        p.wait_hard(vm=8); bar()
        self.ts(9)
        self.w4dma(30, 38)
        p.wait_hard(vm=0); bar()
        self.w4dma(38, 43)
        p.wait_hard(vm=0); bar()
        self.ts(10)
        bar()
        self.ts(11)
        I(f's_cmp_eq_u32 s{sLAYER}, 1'); p.branch('s_cbranch_scc1 L_hend')
        self.wr(RW1, 16, 0)
        self.ts_save()
        hbar()
        self.ts(1)
        self.wr(RW1 + 64, 8, 16)
        hbar()
        I(f's_mov_b32 s{sLAYER}, 1')
        p.branch('s_branch L_hbody')
        p.label('L_hend')
        if TS:
            I(f'v_lshlrev_b32 v{hA0}, 4, v0')
            self.ts_flush(hA1, hB, hA0)

def desc(name, vg=256):
    return f""".p2align 6
.amdhsa_kernel {name}
  .amdhsa_next_free_vgpr {vg}
  .amdhsa_next_free_sgpr 102
  .amdhsa_accum_offset {vg}
  .amdhsa_group_segment_fixed_size 0
  .amdhsa_kernarg_size 88
  .amdhsa_user_sgpr_count 2
  .amdhsa_user_sgpr_kernarg_segment_ptr 1
  .amdhsa_system_sgpr_workgroup_id_x 1
.end_amdhsa_kernel
"""
if __name__ == '__main__':
    out = [a for a in sys.argv[1:] if not a.startswith('--')][0]
    ref = open(f'cdna_kernels/{NAME}.s.ref').read().split('\n')
    hdr = [l for l in ref if l.startswith(';') and '@launch' not in l]
    k = K(); k.main()
    txt = '\n'.join(hdr) + '\n'
    txt += f'; @launch grid=(256,1,1) block=(512,1,1) lds={LDS_BYTES}\n'
    txt += '.amdgcn_target "amdgcn-amd-amdhsa--gfx950"\n.text\n' + k.p.text()
    txt += '.section .rodata,"a"\n' + desc(NAME + '_kernel')
    open(out, 'w').write(txt)
    print(k.p.stats)
```
